```python
import torch

def _softmax(x, axis=-1):
    return torch.softmax(x, dim=axis)

def _gelu(x):
    return torch.nn.functional.gelu(x, approximate='tanh')

def _silu(x):
    return torch.nn.functional.silu(x)

def _sigmoid(x):
    return torch.sigmoid(x)

def _layernorm(x, axis=-1, eps=1e-05):
    m = x.mean(dim=axis, keepdim=True)
    v = x.var(dim=axis, keepdim=True, unbiased=False)
    return (x - m) / torch.sqrt(v + eps)

def _scatter_add(tgt, idx, src, axis=0):
    return tgt.clone().index_add_(axis, idx, src)

def _segment_sum(src, seg, n):
    out = torch.zeros((n,) + src.shape[1:], dtype=src.dtype)
    return out.index_add_(0, seg, src)

def _pad(x, pw):
    flat = tuple((v for pair in reversed(pw) for v in pair))
    return torch.nn.functional.pad(x, flat)
kernel_name = 'standalone__pixart__diffusion'

def setup_inputs():

    _w = lambda a: (lambda t: t.to(torch.bfloat16) if t.is_floating_point() else t)(torch.as_tensor(a))
    B, N, D, M = (2, 256, 1152, 77)
    return {'x': _w((lambda *s: torch.randn(*s, dtype=torch.bfloat16) * 0.05)(B, N, D)), 'c': _w((lambda *s: torch.randn(*s, dtype=torch.bfloat16) * 0.05)(B, D)), 'y': _w((lambda *s: torch.randn(*s, dtype=torch.bfloat16) * 0.1)(B, M, D)), 'wqkv': _w((lambda *s: torch.randn(*s, dtype=torch.bfloat16) * 0.05)(D, 3 * D)), 'wo': _w((lambda *s: torch.randn(*s, dtype=torch.bfloat16) * 0.05)(D, D)), 'wq_c': _w((lambda *s: torch.randn(*s, dtype=torch.bfloat16) * 0.1)(D, D)), 'wkv_c': _w((lambda *s: torch.randn(*s, dtype=torch.bfloat16) * 0.1)(D, 2 * D)), 'wo_c': _w((lambda *s: torch.randn(*s, dtype=torch.bfloat16) * 0.05)(D, D)), 'w_mod': _w((lambda *s: torch.randn(*s, dtype=torch.bfloat16) * 0.05)(D, 6 * D))}

def reference(x, c, y, wqkv, wo, wq_c, wkv_c, wo_c, w_mod):
    B, N, D = x.shape
    mod = (_silu(c) @ w_mod).reshape(B, 6, 1, D)
    shift_a, scale_a, gate_a, shift_m, scale_m, gate_m = [mod[:, i] for i in range(6)]
    h = _layernorm(x, axis=-1) * (1 + scale_a) + shift_a
    qkv = h @ wqkv
    q, k, v = (qkv[..., :D].clone(), qkv[..., D:2 * D].clone(), qkv[..., 2 * D:].clone())
    p = _softmax(torch.einsum('bqd,bkd->bqk', q, k) * D ** (-0.5), axis=-1)
    x = x + gate_a * (torch.einsum('bqk,bkd->bqd', p, v) @ wo)
    hc = _layernorm(x, axis=-1)
    qc = hc @ wq_c
    kvc = y @ wkv_c
    kc, vc = (kvc[..., :D].clone(), kvc[..., D:].clone())
    pc = _softmax(torch.einsum('bqd,bkd->bqk', qc, kc) * D ** (-0.5), axis=-1)
    return x + torch.einsum('bqk,bkd->bqd', pc, vc) @ wo_c
```

```python
import re
TRANS = ('v_exp_f32','v_log_f32','v_rcp_f32','v_rsq_f32','v_sqrt_f32','v_sin_f32','v_cos_f32')
def regs_of(op):
    op = op.strip()
    m = re.fullmatch(r'-?\|?([vas])\[(\d+):(\d+)\]\|?', op)
    if m: return [(m.group(1), i) for i in range(int(m.group(2)), int(m.group(3)) + 1)]
    m = re.fullmatch(r'-?\|?([vas])(\d+)\|?', op)
    if m: return [(m.group(1), int(m.group(2)))]
    if op == 'vcc': return [('s', 106), ('s', 107)]
    if op == 'exec': return [('s', 126), ('s', 127)]
    if op == 'm0': return [('s', 124)]
    return []
def parse(line):
    s = line.split(';')[0].strip()
    if not s or s.endswith(':') or s.startswith('.'): return None
    p = s.split(None, 1); mn = p[0]
    rest = p[1] if len(p) > 1 else ''
    ops = [o.strip() for o in rest.split(',')] if rest else []
    if ops:
        last = ops[-1].split()
        ops[-1] = last[0] if last else ''
        mods = ' '.join(last[1:])
    else: mods = ''
    d, r = [], []
    R = lambda i: regs_of(ops[i]) if i < len(ops) else []
    allr = lambda a: [x for i in range(a, len(ops)) for x in R(i)]
    k = 'other'
    if mn.startswith('v_mfma'):
        k = 'mfma'; d = R(0); r = allr(1)
        return dict(mn=mn, k=k, d=d, r=r, ab=R(1) + R(2), c=R(3), passes=8 if '32x32' in mn else 4, mods=mods)
    if mn.startswith('v_'):
        k = 'valu'
        if mn.startswith('v_cmp'): d = R(0); r = allr(1)
        elif mn.startswith('v_permlane'): d = R(0) + R(1); r = R(0) + R(1)
        elif mn.startswith('v_readfirstlane') or mn.startswith('v_readlane'): d = R(0); r = allr(1)
        else:
            d = R(0); r = allr(1)
            if mn.startswith(('v_fmac', 'v_dot2c', 'v_mac')) or 'dpp' in mods or 'row_' in mods or 'quad_perm' in mods: r = r + R(0)
            if mn.startswith('v_cndmask') and len(ops) == 3: r += regs_of('vcc')
    elif mn.startswith('buffer_load'):
        k = 'vmem'
        if ' lds' in ' ' + mods: r = allr(0) + regs_of('m0'); k = 'dma'
        else: d = R(0); r = allr(1)
    elif mn.startswith('global_load'): k = 'vmem'; d = R(0); r = allr(1)
    elif mn.startswith('buffer_store'): k = 'vst'; r = allr(0)
    elif mn.startswith('ds_read'): k = 'ds'; d = R(0); r = allr(1)
    elif mn.startswith('ds_write'): k = 'ds'; r = allr(0)
    elif mn.startswith('ds_'): k = 'ds'; d = R(0); r = allr(1)
    elif mn.startswith('s_'):
        k = 'salu'
        if mn.startswith(('s_cmp', 's_cbranch', 's_branch', 's_waitcnt', 's_barrier', 's_nop', 's_endpgm', 's_setprio', 's_sleep')): r = allr(0)
        else: d = R(0); r = allr(1)
        if 'saveexec' in mn: d += regs_of('exec')
    return dict(mn=mn, k=k, d=d, r=r, mods=mods, ops=ops)

def pad_hazards(lines):
    out = []; hist = []
    def need(I):
        n = 0
        for P, age in hist:
            req = 0
            pd = set(P['d']);
            if P['k'] == 'valu':
                vw = {x for x in pd if x[0] in 'va'}; sw = {x for x in pd if x[0] == 's'}
                if I['k'] == 'mfma' and vw & set(I['r']): req = max(req, 2)
                if I['k'] == 'valu':
                    dpp = ('row_' in I['mods'] or 'quad_perm' in I['mods'] or I['mn'].startswith('v_permlane'))
                    if dpp and vw & set(I['r']): req = max(req, 2)
                    if I['mn'].startswith(('v_readfirstlane', 'v_readlane')) and vw & set(I['r']): req = max(req, 1)
                    if P['mn'].split('_e')[0] in TRANS and vw & set(I['r']): req = max(req, 1)
                    if P['mn'].startswith('v_dot') and not I['mn'].startswith('v_dot') and vw & (set(I['r']) | set(I['d'])): req = max(req, 3)
                    if sw & set(I['r']): req = max(req, 2)
                    if 'dst_sel' in P['mods'] and vw & set(I['r']): req = max(req, 1)
                if I['k'] in ('vmem', 'dma', 'vst') and sw & set(I['r']): req = max(req, 5)
                if I['k'] == 'salu' and sw & set(I['r']): req = max(req, 1)
            if P['k'] == 'salu':
                if I['k'] == 'dma' and ('s', 124) in pd: req = max(req, 1)
            if P['k'] == 'mfma':
                big = 12 if P['passes'] == 8 else 8
                if I['k'] == 'mfma':
                    if pd & set(I['ab']): req = max(req, big)
                    elif pd & set(I['c']) and (P['d'] != I['c'] or P['mn'] != I['mn']): req = max(req, big - 2)
                elif I['k'] in ('valu', 'vmem', 'dma', 'vst', 'ds') and pd & (set(I['r']) | set(I['d'])): req = max(req, big)
                if I['k'] == 'valu' and set(P['c']) & set(I['d']): req = max(req, 7 if P['passes'] == 8 else 3)
            if P['k'] == 'vst' and ('x4' in P['mn'] or 'x3' in P['mn']):
                data = set(regs_of(P['ops'][0]))
                if data & set(I['d']) and I['k'] != 'salu': req = max(req, 2)
            n = max(n, req - age)
        return n
    for ln in lines:
        I = parse(ln)
        if I is None:
            out.append(ln); continue
        n = need(I)
        if n > 0:
            k = n
            while k > 0:
                m = min(k, 8); out.append(f's_nop {m-1}'); k -= m
            hist = [(P, a + n) for P, a in hist]
        out.append(ln)
        step = 1
        if I['mn'] == 's_nop': step = int(I['ops'][0]) + 1
        hist = [(P, a + step) for P, a in hist if a + step < 20]
        hist.append((I, 0))
    return out

class Asm:
    def __init__(s):
        s.L = []; s.vm = 0; s.lg = 0; s.nlab = 0
    def __call__(s, txt):
        for ln in txt.split('\n'):
            ln = ln.strip()
            if not ln: continue
            s.L.append(ln)
            mn = ln.split()[0]
            if mn.startswith(('buffer_', 'global_')): s.vm += 1
            elif mn.startswith('ds_'): s.lg += 1
        return s
    def vmtok(s): return s.vm
    def lgtok(s): return s.lg
    def wvm(s, tok): s.L.append(f's_waitcnt vmcnt({min(s.vm - tok, 63)})')
    def wlg(s, tok): s.L.append(f's_waitcnt lgkmcnt({min(s.lg - tok, 15)})')
    def w0(s): s.L.append('s_waitcnt vmcnt(0) lgkmcnt(0)')
    def lab(s, p='L'):
        s.nlab += 1; return f'{p}_{s.nlab}'
    def text(s): return '\n'.join(pad_hazards(s.L)) + '\n'
def vr(a, n=1, k='v'): return f'{k}{a}' if n == 1 else f'{k}[{a}:{a+n-1}]'
def ar(a, n=1): return vr(a, n, 'a')
def sr(a, n=1): return vr(a, n, 's')
def interleave(main, fill, ratio=None):
    out = []; n = len(main); f = len(fill); pos = 0
    for i, m in enumerate(main):
        out.append(m)
        tgt = (f * (i + 1) + n - 1) // n
        while pos < tgt: out.append(fill[pos]); pos += 1
    return out
```

```python
import sys; sys.path.insert(0, 'work')
from fw import *
NAME = 'standalone__pixart__diffusion_kernel'
WS_GEN = 0x1C000
WS_MOD = 0
WS_FLAG = 0x20000
F_QKV, F_KVC, F_VWO, F_S, F_KQVO = 0, 216, 252, 396, 460
WS_PROF = 0x40000
WS_QKV = 0x100000
WS_KVC = 0x500000
WS_VWO = 0x600000
WS_S = 0x740000
WS_KQ = 0x780000
WS_SC = 0x840000
WS_SIZE = 0xA00000
RING = 36864
L_SCALE = 147456; L_SHIFT = 152064; L_STATS = 156672; L_SILU = 158720; L_MODRED = 163328
S_WS = 4; S_A = 8; S_B = 12; S_C = 16; S_D = 20
NONCE, WAVE, XCD, JJ, TT, CT, RT, RB = 24, 25, 26, 27, 28, 29, 30, 31
P_X, P_C, P_Y, P_WQKV, P_WO, P_WQC, P_WKV, P_WOC, P_WMOD, P_OUT, P_DBG, P_WS = 36, 38, 40, 42, 44, 46, 48, 50, 52, 54, 56, 58
MASKHI = 100
SPIN = 20000
class G(Asm):
    def __init__(s, prof=False, opt=None):
        super().__init__(); s.prof = prof; s.opt = opt or {}; s.late = False
    def o(s, k, d): return s.opt.get(k, d)
    def srd(s, d, p, size):
        s(f's_mov_b32 s{d}, s{p}\ns_mov_b32 s{d+1}, s{p+1}\ns_mov_b32 s{d+2}, {size}\ns_mov_b32 s{d+3}, 0x20000')
    def stamp(s, i):
        if s.prof and (s.o('pa', 0) != 0) != (s.late or i in (0, 2, 6, 8)) or (s.prof and not s.late and i in (0, 2, 6, 8)): s(f's_memrealtime s[34:35]\ns_waitcnt lgkmcnt(0)\ns_mov_b32 s{80+i}, s34')
    def dma(s, va, srd, sbase, soff, lds, flags='nt', ldsbase=RB):
        s(f's_add_u32 m0, s{ldsbase}, {lds}\ns_add_u32 s32, s{sbase}, {soff}\nbuffer_load_dwordx4 v{va}, s[{srd}:{srd+3}], s32 offen {flags} lds')
    def dma4(s, va, n, srd, sbase, soff, lds, flags='nt', ldsbase=RB, i0=0):
        s(f's_add_u32 m0, s{ldsbase}, {lds}\ns_add_u32 s32, s{sbase}, {soff}')
        for i in range(i0, i0 + n): s(f'buffer_load_dwordx4 v{va+i}, s[{srd}:{srd+3}], s32 offen offset:{1024*i} {flags} lds')
    def emit(s, items):
        for it in items:
            if callable(it): it()
            else: s(it)
    def flush_prof(s):
        if not s.prof: return
        s('s_waitcnt vmcnt(0) lgkmcnt(0)')
        for q in range(4):
            for i in range(4): s(f'v_mov_b32 v{4+i}, s{80+4*q+i}')
            s(f's_lshl_b32 s32, s2, 8\ns_lshl_b32 s33, s{WAVE}, 6\ns_add_u32 s32, s32, s33\ns_add_u32 s32, s32, {WS_PROF + 16*q}')
            s(f'v_mov_b32 v3, 0\nbuffer_store_dwordx4 v[4:7], v3, s[{S_WS}:{S_WS+3}], s32 offen\ns_waitcnt vmcnt(0)')
    def poll_flags(s, vaddr, vtmp):
        L = s.lab('poll'); E = s.lab('pe')
        s(f's_mov_b32 s33, {SPIN}\n{L}:')
        s(f'buffer_load_dword v{vtmp}, v{vaddr}, s[{S_WS}:{S_WS+3}], 0 offen sc1\ns_waitcnt vmcnt(0)')
        s(f'v_cmp_ne_u32 vcc, s{NONCE}, v{vtmp}\ns_sub_u32 s33, s33, 1\ns_cmp_eq_u32 s33, 0\ns_cbranch_scc1 {E}\ns_nop 1\ns_cbranch_vccnz {L}\n{E}:')
    def set_flag(s, sidx, vt):
        s(f's_waitcnt vmcnt(0)\ns_barrier')
        s(f's_lshl_b32 s32, s{sidx}, 7\ns_add_u32 s32, s32, {WS_FLAG}')
        s(f'v_cmp_eq_u32 vcc, 0, v0\nv_mov_b32 v{vt}, 0x7fffffff\nv_cndmask_b32 v{vt}, v{vt}, 0, vcc\nv_mov_b32 v{vt+1}, s{NONCE}')
        s(f'buffer_store_dword v{vt+1}, v{vt}, s[{S_WS}:{S_WS+3}], s32 offen sc1')

def prologue(a):
    a(f's_cmp_ge_u32 s2, 256\ns_cbranch_scc1 L_end')
    a('s_load_dwordx16 s[36:51], s[0:1], 0\ns_load_dwordx8 s[52:59], s[0:1], 64')
    a.stamp(0)
    if a.prof and a.o('pa', 0): a('s_memtime s[34:35]\ns_waitcnt lgkmcnt(0)\ns_mov_b32 s94, s34')
    a(f'v_lshrrev_b32 v2, 6, v0\nv_and_b32 v1, 63, v0\nv_readfirstlane_b32 s{WAVE}, v2')
    a(f's_and_b32 s{XCD}, s2, 7\ns_lshr_b32 s{JJ}, s2, 3\ns_mov_b32 s{MASKHI}, 0xffff0000')
    a(f's_mul_i32 s{RB}, s{WAVE}, {RING}')
    a('s_waitcnt lgkmcnt(0)')
    a.srd(S_WS, P_WS, WS_SIZE)
    a(f'v_mov_b32 v2, {WS_GEN}\nbuffer_load_dword v3, v2, s[{S_WS}:{S_WS+3}], 0 offen sc1')
    a.gtok = a.vmtok()
def get_nonce(a):
    a.wvm(a.gtok)
    a(f'v_readfirstlane_b32 s{NONCE}, v3\ns_mul_i32 s{NONCE}, s{NONCE}, 0x9E3779B1\ns_add_u32 s{NONCE}, s{NONCE}, 0x7F4A7C15')

def strip_dma_addr(a, d, stride, t0, t1):
    a(f'v_lshrrev_b32 v{t0}, 3, v1\nv_mul_u32_u24 v{t0}, {stride}, v{t0}\nv_lshrrev_b32 v{t1}, 4, v1\nv_lshlrev_b32 v{t1}, 1, v{t1}\nv_and_b32 v{d}, 7, v1\nv_xor_b32 v{t1}, v{t1}, v{d}\nv_lshl_add_u32 v{d}, v{t1}, 4, v{t0}')
    for i in range(1, 4): a(f'v_add_u32 v{d+i}, {i*(8*stride-1024)}, v{d}')
def strip_tr_base(a, d, t0, t1, slotstride=1024):
    a(f'v_lshrrev_b32 v{t0}, 5, v1\nv_mul_u32_u24 v{d}, {slotstride}, v{t0}\nv_bfe_u32 v{t0}, v1, 2, 3\nv_lshl_add_u32 v{d}, v{t0}, 7, v{d}\nv_lshrrev_b32 v{t1}, 1, v{t0}\nv_and_b32 v{t0}, 3, v1\nv_lshl_add_u32 v{d}, v{t0}, 3, v{d}')
def unpack4(b, t):
    return [f'v_perm_b32 v{t}, v{b+1}, v{b}, s72', f'v_perm_b32 v{b+3}, v{b+2}, v{t}, s73']
def pack4(a, b):
    a(f'v_perm_b32 v{b}, v{b}, v{b+3}, s74\nv_perm_b32 v{b+1}, v{b+1}, v{b+3}, s75\nv_perm_b32 v{b+2}, v{b+2}, v{b+3}, s76\nv_mov_b32 v{b+3}, s{NONCE}')
def sels(a): a('s_mov_b32 s72, 0x0c04000c\ns_mov_b32 s73, 0x04020100\ns_mov_b32 s74, 0x07060501\ns_mov_b32 s75, 0x07060502\ns_mov_b32 s76, 0x07060503')

def phaseA(a):
    X = lambda j, tb: 64 + (j * 2 + tb) * 4
    ST = lambda b: 208 + 16 * b
    T = 240
    OWN = 32
    NPRE = a.o('npre', 18); POLLPOS = a.o('pollpos', 5)
    ACC = lambda cb, tb: (ar((cb * 2 + tb) * 16, 16) if cb < 3 else vr(OWN + tb * 16, 16))
    WF = lambda j, cb: 96 + (j % 9) * 16 + cb * 4
    a(f's_mul_i32 s{TT}, s{XCD}, 24\ns_add_u32 s{TT}, s{TT}, s{JJ}\ns_lshl_b32 s33, s{XCD}, 2\ns_add_u32 s33, s33, s{JJ}\ns_add_u32 s33, s33, 168\ns_cmp_lt_u32 s{JJ}, 24\ns_cselect_b32 s{TT}, s{TT}, s33')
    a(f's_lshr_b32 s{CT}, s{TT}, 3\ns_and_b32 s{RT}, s{TT}, 7')
    a.srd(S_B, P_WMOD, 1152 * 13824)
    strip_dma_addr(a, 4, 13824, 8, 9)
    a(f'v_add_u32 v5, {32*13824-1024}, v4\nv_add_u32 v6, {2*(32*13824-1024)}, v4')
    a(f's_and_b32 s60, s{TT}, 3\ns_mul_i32 s61, s60, 36\ns_add_u32 s61, s61, s{WAVE}\ns_mul_i32 s61, s61, {8*13824}\ns_lshr_b32 s62, s{TT}, 2\ns_lshl_b32 s33, s62, 7\ns_add_u32 s61, s61, s33')
    for q in range(3): a.dma4(4, 3, S_B, 61, 96 * q * 13824, (27 + 3 * q) * 1024, flags=a.o('mnt', 'nt'))
    mtok = a.vmtok()
    a.srd(S_A, P_C, 4608); a.srd(S_C, P_X, 512 * 2304)
    a(f's_and_b32 s33, s{WAVE}, 1\ns_mul_i32 s63, s33, 2304\ns_mul_i32 s64, s33, 576\ns_lshr_b32 s33, s{WAVE}, 1\ns_mul_i32 s33, s33, 288\ns_add_u32 s64, s64, s33\ns_add_u32 s63, s63, s33\ns_mul_i32 s33, s60, 576\ns_add_u32 s63, s63, s33')
    a(f'v_lshlrev_b32 v8, 3, v1\nv_min_u32 v8, 280, v8\nbuffer_load_dwordx2 v[240:241], v8, s[{S_A}:{S_A+3}], s63 offen')
    ctok = a.vmtok()
    a(f's_add_u32 s64, s64, {L_SILU}\nv_add_u32 v18, s64, v8')
    a.srd(S_D, P_WQKV, 1152 * 6912)
    if a.o('touch', 1):
        a(f's_lshr_b32 s33, s{JJ}, 3\ns_lshl_b32 s33, s33, 2\ns_add_u32 s33, s33, s{WAVE}\ns_mul_i32 s33, s33, {96*128}\ns_mul_i32 s32, s{RT}, {64*2304}\ns_add_u32 s32, s32, s33')
        a(f's_cmp_lt_u32 s{JJ}, 24\ns_cselect_b32 s33, 0, 0x7f000000\nv_lshlrev_b32 v9, 7, v1\nv_add_u32 v9, s33, v9\nv_and_b32 v10, 31, v1\nv_lshlrev_b32 v10, 7, v10\nv_add_u32 v10, s33, v10')
        a(f'buffer_load_dword v2, v9, s[{S_C}:{S_C+3}], s32 offen {a.o("xt","nt")}\ns_add_u32 s32, s32, 8192\nbuffer_load_dword v2, v10, s[{S_C}:{S_C+3}], s32 offen {a.o("xt","nt")}')
        a(f's_cselect_b32 s33, 18, 36\ns_cselect_b32 s79, 7, 3\ns_and_b32 s79, s79, s{RT}\ns_mul_i32 s79, s79, s33\ns_mul_i32 s32, s{WAVE}, 288\ns_add_u32 s79, s79, s32\ns_mul_i32 s79, s79, 6912\ns_lshl_b32 s32, s{CT}, 8\ns_add_u32 s79, s79, s32')
        a(f'v_lshrrev_b32 v9, 1, v1\nv_cmp_gt_u32 vcc, s33, v9\nv_mul_u32_u24 v9, 6912, v9\nv_and_b32 v10, 1, v1\nv_lshl_add_u32 v9, v10, 7, v9\nv_mov_b32 v31, 0x7fffffff\nv_cndmask_b32 v31, v31, v9, vcc')
    def wtouch(): a(f'buffer_load_dword v2, v31, s[{S_D}:{S_D+3}], s79 offen nt\ns_add_u32 s79, s79, {144*6912}')
    if a.o('wt1', 1) == 0: wtouch()
    a.stamp(13)
    a('v_lshrrev_b32 v9, 3, v1\nv_mul_u32_u24 v9, 2304, v9\nv_lshrrev_b32 v10, 4, v1\nv_and_b32 v11, 7, v1')
    if a.o('noswz', 0): a('v_mov_b32 v10, 0')
    a(f'v_xor_b32 v4, v11, v10\nv_xor_b32 v5, 4, v4\nv_lshl_add_u32 v4, v4, 4, v9\nv_lshl_add_u32 v5, v5, 4, v9\nv_add_u32 v5, {8*2304-1024}, v5')
    a(f'v_add_u32 v6, {2*(8*2304-1024)}, v4\nv_add_u32 v7, {2*(8*2304-1024)}, v5')
    a(f's_mul_i32 s60, s{WAVE}, 576\ns_and_b32 s33, s{WAVE}, 1\ns_lshl_b32 s63, s33, 6\ns_add_u32 s63, s63, s60\ns_xor_b32 s33, s33, 1\ns_lshl_b32 s64, s33, 9\ns_add_u32 s64, s64, s60')
    a(f's_mul_i32 s65, s{RT}, {64*2304}\ns_add_u32 s66, s65, s64\ns_add_u32 s65, s65, s63')
    xtok = {}
    xf = a.o('xnt', '')
    def xdma(q, i0=0, n=4):
        if q < 8: a.dma4(4, n, S_C, 65, (q & 1) * 32 * 2304 + 128 * (q >> 1), q * 4096, flags=xf, i0=i0)
        else: a.dma4(8, n, S_C, 66, 0, q * 4096, flags=xf)
        xtok[q] = a.vmtok()
    XE = a.o('xearly', 0)
    for q in range(XE): xdma(q)
    a('v_lshrrev_b32 v9, 2, v1\nv_mul_u32_u24 v9, 2304, v9\nv_and_b32 v11, 3, v1\nv_xor_b32 v8, v11, v10\nv_lshl_add_u32 v8, v8, 4, v9')
    for i in range(1, 4): a(f'v_add_u32 v{8+i}, {i*(16*2304-1024)}, v8')
    a(f's_mul_i32 s67, s63, 3456\ns_mul_i32 s68, s64, 3456\ns_lshl_b32 s33, s{CT}, 8\ns_add_u32 s67, s67, s33\ns_add_u32 s68, s68, s33')
    a('v_lshrrev_b32 v16, 4, v1\nv_mul_u32_u24 v12, 6912, v16\nv_lshlrev_b32 v16, 2, v16\nv_and_b32 v17, 15, v1\nv_xor_b32 v16, v16, v17\nv_lshl_add_u32 v12, v16, 4, v12')
    for i in range(1, 4): a(f'v_add_u32 v{12+i}, {i*(4*6912-1024)}, v12')
    wtok = {}
    def wdma(j):
        if j < 16: a.dma4(12, 4, S_D, 67, 16 * j * 6912, (j % 9) * 4096, flags=a.o('wnt',''))
        else: a.dma4(12, 4, S_D, 68, 16 * (j - 16) * 6912, (j % 9) * 4096, flags=a.o('wnt',''))
        wtok[j] = a.vmtok()
    sels(a)
    a.stamp(9)
    a.wvm(ctok)
    for i in range(2):
        r = 240 + i; t0, t1 = 244 + 4 * i, 245 + 4 * i; u0, u1 = t0 + 2, t0 + 3
        a.emit([f'v_lshlrev_b32 v{t0}, 16, v{r}', f'v_and_b32 v{t1}, s{MASKHI}, v{r}', f'v_mul_f32 v{u0}, 0xbfb8aa3b, v{t0}', f'v_mul_f32 v{u1}, 0xbfb8aa3b, v{t1}',
                f'v_exp_f32 v{u0}, v{u0}', f'v_exp_f32 v{u1}, v{u1}', f'v_add_f32 v{u0}, 1.0, v{u0}', f'v_add_f32 v{u1}, 1.0, v{u1}',
                f'v_rcp_f32 v{u0}, v{u0}', f'v_rcp_f32 v{u1}, v{u1}', f'v_mul_f32 v{t0}, v{t0}, v{u0}', f'v_mul_f32 v{t1}, v{t1}, v{u1}', f'v_cvt_pk_bf16_f32 v{r}, v{t0}, v{t1}'])
    a('ds_write_b64 v18, v[240:241]')
    a(f'v_and_b32 v16, 1, v1\nv_mul_u32_u24 v16, 576, v16\nv_lshrrev_b32 v19, 4, v1\nv_lshl_add_u32 v16, v19, 3, v16\nv_add_u32 v16, {L_SILU}, v16')
    strip_tr_base(a, 17, 18, 20, RING)
    a(f'v_xor_b32 v20, s{WAVE}, v20\nv_lshl_add_u32 v17, v20, 5, v17\nv_add_u32 v18, {2*RING}, v17')
    a(f'v_and_b32 v20, 15, v1\nv_mul_u32_u24 v21, 13824, v20\nv_lshl_add_u32 v21, v19, 4, v21\nv_cmp_gt_u32 vcc, 2, v20\nv_mov_b32 v19, 0x7fffffff\nv_cndmask_b32 v19, v19, v21, vcc')
    a(f's_and_b32 s60, s{TT}, 3\ns_mul_i32 s60, s60, 27648\ns_lshl_b32 s62, s62, 8\ns_add_u32 s60, s60, s62\ns_lshl_b32 s33, s{WAVE}, 6\ns_add_u32 s60, s60, s33')
    get_nonce(a)
    a.wvm(mtok); a('s_waitcnt lgkmcnt(0)\ns_barrier'); a.stamp(1)
    for i in range(9):
        a(f'ds_read_b64_tr_b16 {vr(112+4*i,2)}, v17 offset:{(27+i)*1024}\nds_read_b64_tr_b16 {vr(114+4*i,2)}, v18 offset:{(27+i)*1024}')
        a(f'ds_read_b64 {vr(64+4*i,2)}, v16 offset:{64*i}\nds_read_b64 {vr(66+4*i,2)}, v16 offset:{64*i+32}')
        if i >= 2:
            a('s_waitcnt lgkmcnt(8)')
            a(f'v_mfma_f32_16x16x32_bf16 {vr(T,4)}, {vr(112+4*(i-2),4)}, {vr(64+4*(i-2),4)}, {vr(T,4) if i > 2 else 0}')
    a(f's_waitcnt lgkmcnt(0)\ns_barrier')
    for i in (7, 8): a(f'v_mfma_f32_16x16x32_bf16 {vr(T,4)}, {vr(112+4*i,4)}, {vr(64+4*i,4)}, {vr(T,4)}')
    pack4(a, T)
    a(f'buffer_store_dwordx4 {vr(T,4)}, v19, s[{S_WS}:{S_WS+3}], s60 offen sc1')
    a.stamp(2)
    if a.o('wt1', 1) == 1: wtouch()
    if a.o('delay', 0): a('s_waitcnt vmcnt(0)\nL_dly:\ns_memrealtime s[34:35]\ns_waitcnt lgkmcnt(0)\ns_sub_u32 s34, s34, s80\ns_cmp_lt_u32 s34, 800\ns_cbranch_scc1 L_dly'); a.stamp(2)
    for q in range(XE, 9):
        if q == a.o('wt2', 4): wtouch()
        xdma(q)
    a.stamp(12)
    a('v_and_b32 v16, 31, v1\nv_lshrrev_b32 v17, 5, v1\nv_lshrrev_b32 v18, 3, v16\nv_lshlrev_b32 v18, 10, v18\nv_and_b32 v19, 7, v16\nv_lshl_add_u32 v18, v19, 7, v18')
    a(f'v_add_u32 v18, s{RB}, v18\nv_bfe_u32 v19, v16, 1, 3\nv_xor_b32 v19, v19, v17')
    for jj in range(4): a(f'v_xor_b32 v20, {2*jj}, v19\nv_lshl_add_u32 v{4+jj}, v20, 4, v18')
    a('v_lshrrev_b32 v18, 4, v16\nv_lshlrev_b32 v18, 10, v18\nv_and_b32 v19, 15, v16\nv_lshl_add_u32 v18, v19, 6, v18')
    a(f'v_add_u32 v18, s{RB}, v18\nv_bfe_u32 v19, v16, 2, 2\nv_xor_b32 v19, v19, v17')
    for jj in range(2): a(f'v_xor_b32 v20, {2*jj}, v19\nv_lshl_add_u32 v{8+jj}, v20, 4, v18')
    a('v_mov_b32 v20, 0\nv_mov_b32 v21, 0\nv_mov_b32 v22, 0\nv_mov_b32 v23, 0\ns_mov_b32 s69, 0x3f803f80')
    a('v_lshrrev_b32 v16, 5, v1\nv_bfe_u32 v17, v1, 2, 2\nv_lshlrev_b32 v18, 11, v16\nv_lshl_add_u32 v18, v17, 8, v18\nv_and_b32 v19, 1, v1\nv_lshl_add_u32 v18, v19, 3, v18')
    a(f'v_add_u32 v18, s{RB}, v18\nv_bfe_u32 v19, v1, 4, 1\nv_lshlrev_b32 v19, 1, v19\nv_bfe_u32 v30, v1, 1, 1\nv_add_u32 v19, v19, v30\nv_lshlrev_b32 v17, 2, v17\nv_xor_b32 v19, v19, v17')
    for cb in range(4):
        a(f's_add_u32 s33, s{WAVE}, {cb+1}\ns_and_b32 s33, s33, 3\ns_lshl_b32 s33, s33, 2\nv_xor_b32 v30, s33, v19\nv_lshl_add_u32 v{24+cb}, v30, 4, v18')
    a(f's_lshl_b32 s33, s63, 1\nv_lshlrev_b32 v16, 5, v16\nv_add_u32 v16, {L_SCALE}, v16\nv_add_u32 v28, s33, v16\ns_lshl_b32 s33, s64, 1\nv_add_u32 v29, s33, v16')
    a(f's_mul_i32 s70, s{WAVE}, 72\ns_lshr_b32 s71, s{RT}, 2\ns_mul_i32 s71, s71, 13824')
    a('v_add_u32 v16, s70, v1\nv_lshlrev_b32 v16, 4, v16\nv_and_b32 v17, 7, v1\nv_add_u32 v17, s70, v17\nv_add_u32 v17, 64, v17\nv_lshlrev_b32 v17, 4, v17\nv_bfe_u32 v31, v1, 3, 1')
    a(f'v_add_u32 v19, {L_SCALE}, v16\nv_add_u32 v18, {L_SHIFT}, v16\nv_mul_u32_u24 v10, 4608, v31\nv_sub_u32 v30, v17, v10\nv_add_u32 v30, {L_SHIFT}, v30\nv_add_u32 v17, v17, v10\nv_cvt_f32_u32 v31, v31\nv_add_u32 v11, 4608, v16')
    def stats(steps):
        o = []
        for j in steps:
            for i in range(4):
                for tb in range(2):
                    r = X(j, tb) + i
                    o += [f'v_dot2_f32_bf16 v{20+tb}, v{r}, s69, v{20+tb}', f'v_dot2_f32_bf16 v{22+tb}, v{r}, v{r}, v{22+tb}']
        return o
    for L in range(5):
        a.wvm(xtok[2 * L + 1 if L < 4 else 8])
        steps = range(4 * L, 4 * L + 4) if L < 4 else (16, 17)
        for j in steps:
            for tb in range(2):
                if L < 4: a(f'ds_read_b128 {vr(X(j,tb),4)}, v{4+(j&3)} offset:{(8*L+4*tb)*1024}')
                else: a(f'ds_read_b128 {vr(X(j,tb),4)}, v{8+(j&1)} offset:{(32+2*tb)*1024}')
        a('s_waitcnt lgkmcnt(0)')
        st = stats(steps)
        if L < 4: wdma(2 * L); a.emit(st[:32]); wdma(2 * L + 1); a.emit(st[32:])
        else: wdma(8); a.emit(st)
    a.stamp(3)
    a('v_permlane32_swap_b32 v20, v21\nv_permlane32_swap_b32 v22, v23\nv_add_f32 v20, v20, v21\nv_add_f32 v21, v22, v23')
    a(f's_lshl_b32 s33, s{WAVE}, 9\nv_lshlrev_b32 v4, 3, v1\nv_add_u32 v4, {L_STATS}, v4\nv_add_u32 v5, s33, v4\nds_write_b64 v5, v[20:21]\ns_waitcnt lgkmcnt(0)\ns_barrier')
    for w in range(4): a(f'ds_read_b64 {vr(T+2*w,2)}, v4 offset:{512*w}')
    a('s_waitcnt lgkmcnt(0)')
    a(f'v_add_f32 v{T}, v{T}, v{T+2}\nv_add_f32 v{T+1}, v{T+1}, v{T+3}\nv_add_f32 v{T+4}, v{T+4}, v{T+6}\nv_add_f32 v{T+5}, v{T+5}, v{T+7}')
    a(f'v_add_f32 v{T}, v{T}, v{T+4}\nv_add_f32 v{T+1}, v{T+1}, v{T+5}')
    inv = '0x3a638e39'
    a(f'v_mul_f32 v{T}, {inv}, v{T}\nv_mul_f32 v{T+1}, {inv}, v{T+1}\nv_fma_f32 v{T+1}, -v{T}, v{T}, v{T+1}\nv_max_f32 v{T+1}, 0, v{T+1}\nv_add_f32 v{T+1}, 0x3727c5ac, v{T+1}')
    a(f'v_rsq_f32 v20, v{T+1}\ns_nop 0\nv_mul_f32 v22, v{T}, v20\nv_sub_f32 v22, 0, v22\nv_mov_b32 v21, v20\nv_mov_b32 v23, v22')
    a('v_permlane32_swap_b32 v20, v21\nv_permlane32_swap_b32 v22, v23')
    a('v_mov_b32 v4, v20\nv_mov_b32 v5, v22\nv_mov_b32 v6, v21\nv_mov_b32 v7, v23')
    a.stamp(4)
    def w_reads(j):
        o = [lambda: a.wvm(wtok[j])]
        for cb in range(4):
            s0 = (j % 9) * 4096
            o += [f'ds_read_b64_tr_b16 {ar(WF(j,cb),2)}, v{24+cb} offset:{s0}', f'ds_read_b64_tr_b16 {ar(WF(j,cb)+2,2)}, v{24+cb} offset:{s0+1024}']
        return o
    def prenorm(j):
        o = []
        for i in range(4):
            r0, r1 = X(j, 0) + i, X(j, 1) + i; t = T + 4 * (i & 1)
            o += [f'v_lshlrev_b32 v{t}, 16, v{r0}', f'v_and_b32 v{t+1}, s{MASKHI}, v{r0}', f'v_lshlrev_b32 v{t+2}, 16, v{r1}', f'v_and_b32 v{t+3}, s{MASKHI}, v{r1}',
                  f'v_pk_fma_f32 {vr(t,2)}, {vr(t,2)}, v[4:5], v[4:5] op_sel:[0,0,1] op_sel_hi:[1,0,1]', f'v_pk_fma_f32 {vr(t+2,2)}, {vr(t+2,2)}, v[6:7], v[6:7] op_sel:[0,0,1] op_sel_hi:[1,0,1]',
                  f'v_cvt_pk_bf16_f32 v{r0}, v{t}, v{t+1}', f'v_cvt_pk_bf16_f32 v{r1}, v{t+2}, v{t+3}']
        return o
    PB = lambda g, p: (32 + 16 * g + 4 * p) if g < 2 else (208 + 4 * p)
    def poll_loads():
        for p in range(4):
            a(f's_add_u32 s32, s71, {p*27648}')
            for g, va in enumerate((16, 11, 17)): a(f'buffer_load_dwordx4 {vr(PB(g,p),4)}, v{va}, s[{S_WS}:{S_WS+3}], s32 offen sc1')
    pre = list(range(18 - NPRE, 18))
    for j in range(9):
        a.emit(w_reads(j))
        for jj in pre[j * len(pre) // 9:(j + 1) * len(pre) // 9]: a.emit(prenorm(jj))
        a('s_waitcnt lgkmcnt(0)')
        if j == POLLPOS: poll_loads(); ptok = a.vmtok()
        wdma(j + 9)
    a.stamp(10)
    Lp = a.lab('mp'); Le = a.lab('me'); Lc = a.lab('mc')
    a(f's_mov_b32 s33, {SPIN}'); a.wvm(ptok); a(f's_branch {Lc}\n{Lp}:')
    vmsave = a.vm
    poll_loads(); a('s_waitcnt vmcnt(0)'); a.vm = vmsave
    a(f'{Lc}:')
    tg = [PB(g, p) + 3 for g in range(3) for p in range(4)]
    a(f'v_xor_b32 v{T}, s{NONCE}, v{tg[0]}\nv_xor_b32 v{T+1}, s{NONCE}, v{tg[1]}')
    for i in range(2, 12, 2): a(f'v_xor_b32 v{T+2}, s{NONCE}, v{tg[i]}\nv_xor_b32 v{T+3}, s{NONCE}, v{tg[i+1]}\nv_or3_b32 v{T+(i//2&1)}, v{T+(i//2&1)}, v{T+2}, v{T+3}')
    a(f'v_or_b32 v{T}, v{T}, v{T+1}\nv_cmp_ne_u32 vcc, 0, v{T}\ns_sub_u32 s33, s33, 1\ns_cmp_eq_u32 s33, 0\ns_cbranch_scc1 {Le}\ns_nop 1\ns_cbranch_vccnz {Lp}\n{Le}:')
    a.stamp(5)
    for g in range(3):
        for p in range(4): a.emit(unpack4(PB(g, p), T + p))
        b = PB(g, 0)
        for i in range(4): a(f'v_add_f32 v{b+i}, v{b+i}, v{b+4+i}\nv_add_f32 v{b+8+i}, v{b+8+i}, v{b+12+i}')
        for i in range(4): a(f'v_add_f32 v{b+i}, v{b+i}, v{b+8+i}')
        def rnd(): a(f'v_cvt_pk_bf16_f32 v{b}, v{b}, v{b+1}\nv_cvt_pk_bf16_f32 v{b+2}, v{b+2}, v{b+3}\nv_and_b32 v{b+1}, s{MASKHI}, v{b}\nv_lshlrev_b32 v{b}, 16, v{b}\nv_and_b32 v{b+3}, s{MASKHI}, v{b+2}\nv_lshlrev_b32 v{b+2}, 16, v{b+2}')
        if a.o('mimic', 1): rnd()
        if g > 0:
            for i in range(4): a(f'v_add_f32 v{b+i}, {"1.0" if g == 1 else "v31"}, v{b+i}')
            if a.o('mimic', 1): rnd()
        a(f'ds_write_b128 v{(18,19,30)[g]}, {vr(b,4)}')
    a('s_waitcnt lgkmcnt(0)')
    def st_reads(j):
        va, off = (28, 64 * j) if j < 16 else (29, 64 * (j - 16))
        b = ST(j & 1)
        return [f'ds_read_b128 {vr(b,4)}, v{va} offset:{off}', f'ds_read_b128 {vr(b+8,4)}, v{va} offset:{off+4608}',
                f'ds_read_b128 {vr(b+4,4)}, v{va} offset:{off+16}', f'ds_read_b128 {vr(b+12,4)}, v{va} offset:{off+4608+16}']
    def modulate(j):
        o = []; b = ST(j & 1)
        for i in range(4):
            t = T + 4 * (i & 1)
            r0, r1 = X(j, 0) + i, X(j, 1) + i
            o += [f'v_lshlrev_b32 v{t}, 16, v{r0}', f'v_and_b32 v{t+1}, s{MASKHI}, v{r0}', f'v_lshlrev_b32 v{t+2}, 16, v{r1}', f'v_and_b32 v{t+3}, s{MASKHI}, v{r1}']
            if j not in pre: o += [f'v_fma_f32 v{t}, v{t}, v20, v22', f'v_fma_f32 v{t+1}, v{t+1}, v20, v22', f'v_fma_f32 v{t+2}, v{t+2}, v21, v23', f'v_fma_f32 v{t+3}, v{t+3}, v21, v23']
            o += [f'v_fma_f32 v{t}, v{t}, v{b+2*i}, v{b+8+2*i}', f'v_fma_f32 v{t+1}, v{t+1}, v{b+2*i+1}, v{b+8+2*i+1}',
                  f'v_fma_f32 v{t+2}, v{t+2}, v{b+2*i}, v{b+8+2*i}', f'v_fma_f32 v{t+3}, v{t+3}, v{b+2*i+1}, v{b+8+2*i+1}',
                  f'v_cvt_pk_bf16_f32 v{r0}, v{t}, v{t+1}', f'v_cvt_pk_bf16_f32 v{r1}, v{t+2}, v{t+3}']
        return o
    a.emit(st_reads(0) + st_reads(1))
    a('s_waitcnt lgkmcnt(4)')
    a.emit(modulate(0))
    a.stamp(11)
    for j in range(18):
        a('s_waitcnt lgkmcnt(0)')
        mf = [f'v_mfma_f32_32x32x16_bf16 {ACC(cb,tb)}, {ar(WF(j,cb),4)}, {vr(X(j,tb),4)}, {ACC(cb,tb) if j else 0}' for cb in range(4) for tb in range(2)]
        lds = (st_reads(j + 2) if j < 16 else []) + (w_reads(j + 1) if 8 <= j < 17 else [])
        mod = modulate(j + 1) if j < 17 else []
        fills = [[] for _ in range(8)]
        for i, it in enumerate(lds): fills[min(i // 2, 7)].append(it)
        tot = len(lds) + len(mod); k = 0
        for i in range(8):
            while k < len(mod) and sum(len(f) for f in fills[:i + 1]) < (tot * (i + 1) + 7) // 8: fills[i].append(mod[k]); k += 1
        for i in range(8):
            a(mf[i]); a.emit(fills[i])
    a.stamp(6)
    a(f'v_lshlrev_b32 v10, 4, v1\nv_add_u32 v11, s{RB}, v10')
    for cb in range(3):
        for tb in range(2):
            for q in range(4): a(f'ds_write_b128 v11, {ar((cb*2+tb)*16+4*q,4)} offset:{cb*8192+tb*4096+q*1024}')
    for cb in range(3):
        a(f's_add_u32 s33, s{WAVE}, {3-cb}\ns_and_b32 s33, s33, 3\ns_mul_i32 s33, s33, {RING}\nv_add_u32 v{12+cb}, s33, v10')
    a('v_bfe_u32 v16, v1, 4, 1\nv_mul_u32_u24 v16, 36864, v16\nv_and_b32 v17, 15, v1\nv_lshl_add_u32 v16, v17, 4, v16\nv_lshrrev_b32 v17, 5, v1\nv_lshl_add_u32 v16, v17, 8, v16')
    a(f's_mul_i32 s33, s{CT}, 57\ns_lshr_b32 s33, s33, 9\ns_mul_i32 s70, s33, 9\ns_sub_u32 s70, s{CT}, s70\ns_lshl_b32 s70, s70, 2\ns_add_u32 s70, s70, s{WAVE}')
    a(f's_mul_i32 s71, s{RT}, 144\ns_add_u32 s70, s70, s71\ns_lshl_b32 s70, s70, 10\ns_mul_i32 s33, s33, 0x120000\ns_add_u32 s70, s70, s33\ns_add_u32 s70, s70, {WS_QKV}\ns_add_u32 s71, s70, 73728')
    a('s_waitcnt lgkmcnt(0)\ns_barrier')
    for tb in range(2):
        toks = []
        for cb in range(3):
            for q in range(4): a(f'ds_read_b128 {vr(64+tb*48+cb*16+4*q,4)}, v{12+cb} offset:{cb*8192+tb*4096+q*1024}')
            toks.append(a.lgtok())
        if tb == 0: t0 = toks
        else: t1 = toks
        if tb == 0:
            for cb in range(3):
                a.wlg(t0[cb])
                for i in range(16): a(f'v_add_f32 v{OWN+i}, v{OWN+i}, v{64+cb*16+i}')
    def pack(tb):
        R = OWN + 16 * tb; P = 160 + 8 * tb
        for hh in range(2):
            for i, rr in enumerate((4 * hh, 4 * hh + 2, 8 + 4 * hh, 10 + 4 * hh)): a(f'v_cvt_pk_bf16_f32 v{P+4*hh+i}, v{R+rr}, v{R+rr+1}')
            a(f'buffer_store_dwordx4 {vr(P+4*hh,4)}, v16, s[{S_WS}:{S_WS+3}], s{70+tb} offen offset:{512*hh} sc1')
    pack(0)
    for cb in range(3):
        a.wlg(t1[cb])
        for i in range(16): a(f'v_add_f32 v{OWN+16+i}, v{OWN+16+i}, v{112+cb*16+i}')
    pack(1)
    a.stamp(7)
    a.set_flag(TT, 10)
    a.stamp(8)
    if a.prof and a.o('pa', 0): a('s_memtime s[34:35]\ns_waitcnt lgkmcnt(0)\ns_sub_u32 s94, s34, s94')

def build(prof=False, opt=None, phases=None):
    a = G(prof, opt)
    prologue(a)
    a(f's_cmp_lt_u32 s{XCD}, 6\ns_cselect_b32 s33, 28, 24\ns_cmp_ge_u32 s{JJ}, s33\ns_cbranch_scc1 L_side')
    phaseA(a)
    if phases: phases['main'](a)
    a('s_branch L_fin\nL_side:')
    a.vm = a.gtok; a.lg = 0
    if phases: phases['side'](a)
    a('L_fin:'); a.flush_prof(); a('L_end:\ns_endpgm')
    hdr = open('standalone__pixart__diffusion.s.ref').read().split('; Override launch')[0]
    hdr += f'; @launch grid=(256,1,1) block=(256,1,1) lds=163840\n.amdgcn_target "amdgcn-amd-amdhsa--gfx950"\n.text\n.globl {NAME}\n.p2align 8\n.type {NAME},@function\n{NAME}:\n'
    kd = f'''.section .rodata,"a"
.p2align 6
.amdhsa_kernel {NAME}
  .amdhsa_next_free_vgpr 512
  .amdhsa_next_free_sgpr 102
  .amdhsa_accum_offset 256
  .amdhsa_group_segment_fixed_size 0
  .amdhsa_kernarg_size 96
  .amdhsa_user_sgpr_count 2
  .amdhsa_user_sgpr_kernarg_segment_ptr 1
  .amdhsa_system_sgpr_workgroup_id_x 1
  .amdhsa_float_denorm_mode_32 3
.end_amdhsa_kernel
'''
    return hdr + a.text() + kd
if __name__ == '__main__':
    open('t.s', 'w').write(build(prof=True))
```

```python
import sys; sys.path.insert(0, 'work')
from gen import *
import gen
SS = 77
LOG2E = '0x3fb8aa3b'
WSR = f's[{S_WS}:{S_WS+3}]'
def mf32(d, A, B, c): return f'v_mfma_f32_16x16x32_bf16 {d}, {A}, {B}, {c}'
def mf16(d, A, B, c): return f'v_mfma_f32_16x16x16_bf16 {d}, {A}, {B}, {c}'
def flag2(a, sidx, vt, cnt=0):
    a(f's_waitcnt vmcnt({cnt})\ns_barrier')
    a(f's_lshl_b32 s32, s{sidx}, 7\ns_add_u32 s32, s32, {WS_FLAG}')
    a(f'v_cmp_eq_u32 vcc, 0, v0\nv_mov_b32 v{vt}, 0x7fffffff\nv_cndmask_b32 v{vt}, v{vt}, 0, vcc\nv_mov_b32 v{vt+1}, s{NONCE}')
    a(f'buffer_store_dword v{vt+1}, v{vt}, {WSR}, s32 offen sc1')
def rtile_dma_addr(a, d, t0, t1):
    a(f'v_lshrrev_b32 v{t0}, 3, v1\nv_mul_u32_u24 v{t0}, 2304, v{t0}\nv_lshrrev_b32 v{t1}, 4, v1\nv_and_b32 v{d+2}, 7, v1\nv_xor_b32 v{d}, v{d+2}, v{t1}\nv_xor_b32 v{d+1}, 4, v{d}')
    a(f'v_lshl_add_u32 v{d}, v{d}, 4, v{t0}\nv_lshl_add_u32 v{d+1}, v{d+1}, 4, v{t0}\nv_add_u32 v{d+1}, {8*2304-1024}, v{d+1}')
    a(f'v_add_u32 v{d+2}, {2*(8*2304-1024)}, v{d}\nv_add_u32 v{d+3}, {2*(8*2304-1024)}, v{d+1}')
def tr_addrs(a, d, sx, t0, t1, t2):
    strip_tr_base(a, t2, t0, t1)
    a(f'v_add_u32 v{t2}, s{RB}, v{t2}\nv_xor_b32 v{t1}, s{sx}, v{t1}')
    for c in range(4): a(f'v_xor_b32 v{t0}, {c}, v{t1}\nv_lshl_add_u32 v{d+c}, v{t0}, 5, v{t2}')
def rt_base(a, d, f, t):
    a(f'v_bfe_u32 v{t}, v1, 3, 1\nv_lshlrev_b32 v{d}, 10, v{t}\nv_and_b32 v{t}, 7, v1\nv_lshl_add_u32 v{d}, v{t}, 7, v{d}\nv_bfe_u32 v{t}, v1, 4, 1\nv_lshl_add_u32 v{d}, v{t}, 3, v{d}')
    a(f'v_bfe_u32 v{f}, v1, 1, 3\nv_lshrrev_b32 v{t}, 5, v1\nv_xor_b32 v{f}, v{f}, v{t}')
def reduce4(a, M, own, oth, tmp, v10=10):
    a(f'v_lshlrev_b32 v{v10}, 4, v1\nv_add_u32 v{v10+1}, s{RB}, v{v10}')
    for sg in (1, 2, 3):
        for m in range(M): a(f'ds_write_b128 v{v10+1}, {ar(oth(sg,m),4)} offset:{((sg-1)*M+m)*1024}')
    for sg in (1, 2, 3): a(f's_xor_b32 s33, s{WAVE}, {sg}\ns_mul_i32 s33, s33, {RING}\nv_add_u32 v{v10+1+sg}, s33, v{v10}')
    a('s_waitcnt lgkmcnt(0)\ns_barrier')
    toks = []
    for sg in (1, 2, 3):
        for m in range(M): a(f'ds_read_b128 {vr(tmp+((sg-1)*M+m)*4,4)}, v{v10+1+sg} offset:{((sg-1)*M+m)*1024}')
        toks.append(a.lgtok())
    for sg in (1, 2, 3):
        a.wlg(toks[sg-1])
        for i in range(4 * M): a(f'v_add_f32 v{own+i}, v{own+i}, v{tmp+(sg-1)*M*4+i}')
def l16(a, d):
    a(f'v_lshlrev_b32 v{d}, 4, v1\nv_add_u32 v{d+1}, 4096, v{d}\nv_add_u32 v{d+2}, 8192, v{d}')
def fload(a, dst, i, va, so): a(f'buffer_load_dwordx4 {dst}, v{va+(i>>2)}, {WSR}, s{so} offen offset:{(i&3)*1024} sc1')

OWN = 32
def ACC5(b, kb, e):
    sg = b + 2 * (e >> 1); m = kb * 2 + (e & 1)
    return vr(OWN + 4 * m, 4) if sg == 0 else ar((sg - 1) * 40 + 4 * m, 4)
def side(a):
    a(f's_cmp_lt_u32 s{JJ}, 26\ns_cbranch_scc1 L_help')
    a(f's_lshl_b32 s{SS}, s{XCD}, 2\ns_add_u32 s{SS}, s{SS}, s{JJ}\ns_sub_u32 s{SS}, s{SS}, 28\ns_mul_i32 s33, s{XCD}, 6\ns_add_u32 s33, s33, s{JJ}\ns_sub_u32 s33, s33, 38\ns_cmp_lt_u32 s{XCD}, 6\ns_cselect_b32 s{SS}, s{SS}, s33')
    a.srd(S_A, P_Y, 2 * 177408); a.srd(S_B, P_WKV, 1152 * 4608)
    strip_dma_addr(a, 4, 4608, 16, 17)
    rtile_dma_addr(a, 8, 16, 17)
    a('v_lshrrev_b32 v16, 3, v1\nv_min_u32 v17, 4, v16\nv_sub_u32 v16, v16, v17\nv_mul_u32_u24 v16, 2304, v16\nv_sub_u32 v12, v9, v16')
    a(f's_mul_i32 s60, s{WAVE}, 5\ns_lshl_b32 s33, s{WAVE}, 2\ns_add_u32 s33, s33, 2\ns_cmp_lt_u32 s{WAVE}, 2\ns_cselect_b32 s60, s60, s33\ns_cselect_b32 s61, 5, 4')
    a(f's_and_b32 s33, s{WAVE}, 1\ns_mul_i32 s62, s33, 177408\ns_sub_u32 s63, 177408, s62\ns_lshl_b32 s64, s{SS}, 7\ns_and_b32 s65, s{WAVE}, 2\ns_mov_b32 s66, s{RB}')
    def wd(dc):
        a(f's_add_u32 s67, s60, {dc}\ns_min_u32 s67, s67, 17\ns_mul_i32 s67, s67, {64*4608}\ns_add_u32 s67, s67, s64')
        for h in range(2): a.dma4(4, 4, S_B, 67, h * 32 * 4608, h * 4096, flags='', ldsbase=66)
    def yd(dc, b):
        a(f's_add_u32 s67, s60, {dc}\ns_min_u32 s67, s67, 17\ns_lshl_b32 s67, s67, 7\ns_add_u32 s67, s67, s{62+b}')
        L = 16384 + 10240 * b
        a.dma4(8, 4, S_A, 67, 0, L, flags=''); a.dma4(8, 4, S_A, 67, 32 * 2304, L + 4096, flags='')
        a.dma4(8, 1, S_A, 67, 64 * 2304, L + 8192, flags=''); a(f'buffer_load_dwordx4 v12, s[{S_A}:{S_A+3}], s32 offen offset:1024 lds')
    wd(0); yd(0, 0); yd(0, 1); a('s_xor_b32 s66, s66, 8192') if False else a(f's_add_u32 s66, s{RB}, 8192'); wd(1); a(f's_mov_b32 s66, s{RB}\ns_mov_b32 s68, 8192')
    tr_addrs(a, 20, 65, 16, 17, 18)
    rt_base(a, 18, 17, 16)
    a(f'v_add_u32 v18, s{RB}, v18')
    for q in range(4): a(f'v_xor_b32 v16, {2*q}, v17\nv_lshl_add_u32 v{24+q}, v16, 4, v18')
    for i in range(40): a(f'v_mov_b32 v{OWN+i}, 0')
    for i in range(120): a(f'v_accvgpr_write_b32 a{i}, 0')
    sels(a)
    a('s_waitcnt vmcnt(36)')
    a(f'v_readfirstlane_b32 s{NONCE}, v3\ns_mul_i32 s{NONCE}, s{NONCE}, 0x9E3779B1\ns_add_u32 s{NONCE}, s{NONCE}, 0x7F4A7C15')
    WF = lambda h, e: 104 + (h * 4 + e) * 4
    YF = lambda h, kb: 136 + (h * 5 + kb) * 4
    a('L_kvc:')
    for b in range(2):
        a('s_waitcnt vmcnt(18)')
        if b == 0:
            for h in range(2):
                for e in range(4): a(f'ds_read_b64_tr_b16 {vr(WF(h,e),2)}, v{20+e} offset:{h*4096}\nds_read_b64_tr_b16 {vr(WF(h,e)+2,2)}, v{20+e} offset:{h*4096+2048}')
        for h in range(2):
            for kb in range(5):
                for j2 in range(2): a(f'ds_read_b64 {vr(YF(h,kb)+2*j2,2)}, v{24+2*h+j2} offset:{16384+10240*b+2048*kb}')
        a('s_waitcnt lgkmcnt(0)')
        yd(1, b)
        if b == 1:
            wd(2); a('s_add_u32 s66, s66, s68')
            for e in range(4): a(f'v_add_u32 v{20+e}, s68, v{20+e}')
            a('s_sub_u32 s68, 0, s68\ns_add_u32 s60, s60, 1\ns_sub_u32 s61, s61, 1')
        for h in range(2):
            for kb in range(5):
                for e in range(4): a(mf32(ACC5(b,kb,e), vr(WF(h,e),4), vr(YF(h,kb),4), ACC5(b,kb,e)))
    a('s_cmp_lg_u32 s61, 0\ns_cbranch_scc1 L_kvc\ns_nop 7\ns_waitcnt vmcnt(0)')
    a.stamp(1)
    reduce4(a, 10, OWN, lambda sg, m: (sg - 1) * 40 + 4 * m, 104)
    a(f's_cmp_ge_u32 s{SS}, 18\ns_cselect_b32 s69, 18, 0\ns_cselect_b32 s70, 0x5A000, 0\ns_sub_u32 s69, s{SS}, s69')
    a(f's_and_b32 s33, s{WAVE}, 1\ns_mul_i32 s71, s33, 180\ns_lshl_b32 s33, s69, 1\ns_add_u32 s71, s71, s33\ns_lshr_b32 s33, s{WAVE}, 1\ns_add_u32 s71, s71, s33\ns_lshl_b32 s71, s71, 10\ns_add_u32 s71, s71, s70\ns_add_u32 s71, s71, {WS_KVC}')
    for kb in range(5):
        R = OWN + 8 * kb; P = 232 + 4 * (kb & 1)
        for i in range(4): a(f'v_cvt_pk_bf16_f32 v{P+i}, v{R+2*i}, v{R+2*i+1}')
        a(f'buffer_store_dwordx4 {vr(P,4)}, v10, {WSR}, s71 offen sc1\ns_add_u32 s71, s71, 36864')
    a('s_barrier')
    a.stamp(2)
    WQ = lambda i, e: (ar(120 + 4 * (i * 4 + e), 4) if i * 4 + e < 34 else vr(232 + 4 * (i * 4 + e - 34), 4))
    WQ2 = lambda i, e, h: (ar(120 + 4 * (i * 4 + e) + 2 * h, 2) if i * 4 + e < 34 else vr(232 + 4 * (i * 4 + e - 34) + 2 * h, 2))
    FR = lambda i, b, kb: vr(72 + ((i & 3) * 10 + b * 5 + kb) * 4, 4)
    def common():
        a(f's_add_u32 s78, s{SS}, {F_KVC}')
        flag2(a, 78, 16, 36)
        l16(a, 28)
        a(f's_and_b32 s33, s{WAVE}, 1\ns_mul_i32 s60, s33, 184320\ns_sub_u32 s65, 184320, s60\ns_mul_i32 s33, s{WAVE}, 9216\ns_add_u32 s33, s33, s70\ns_add_u32 s33, s33, {WS_KVC}\ns_add_u32 s60, s60, s33\ns_add_u32 s65, s65, s33')
        for kb in range(1, 5): a(f's_add_u32 s{60+kb}, s60, {kb*36864}\ns_add_u32 s{65+kb}, s65, {kb*36864}')
        a(f's_cmp_eq_u32 s70, 0\ns_cselect_b32 s33, 0, 18\ns_add_u32 s33, s33, {F_KVC}\nv_min_u32 v16, 17, v1\nv_add_u32 v16, s33, v16\nv_lshlrev_b32 v16, 7, v16\nv_add_u32 v16, {WS_FLAG}, v16')
    def mm(kq):
        a.stamp(3)
        a.poll_flags(16, 17)
        a.stamp(4)
        tok = {}
        def ld(i):
            for b in range(2):
                for kb in range(5): fload(a, FR(i,b,kb), i, 28, 60 + 5 * b + kb)
            tok[i] = a.vmtok()
        for i in range(4): ld(i)
        for i in range(9):
            a.wvm(tok[i])
            for b in range(2):
                for kb in range(5):
                    for e in range(4):
                        A, B = (WQ(i,e), FR(i,b,kb)) if kq else (FR(i,b,kb), WQ(i,e))
                        a(mf32(ACC5(b,kb,e), A, B, ACC5(b,kb,e) if i else 0))
            if i + 4 < 9: ld(i + 4)
    a(f's_cmp_lg_u32 s70, 0\ns_cbranch_scc1 L_vo')
    a.srd(S_A, P_WQC, 1152 * 2304)
    rtile_dma_addr(a, 4, 16, 17)
    a(f's_mul_i32 s60, s{WAVE}, 9\ns_mul_i32 s61, s69, {64*2304}')
    for q in range(9):
        a(f's_add_u32 s62, s60, {q}\ns_and_b32 s63, s62, 1\ns_mul_i32 s63, s63, {32*2304}\ns_lshr_b32 s62, s62, 1\ns_lshl_b32 s62, s62, 7\ns_add_u32 s62, s62, s63\ns_add_u32 s62, s62, s61')
        a.dma4(4, 4, S_A, 62, 0, q * 4096, flags='')
    common()
    rt_base(a, 18, 17, 19)
    for p in range(2):
        a(f's_mul_i32 s33, s{WAVE}, 9\ns_add_u32 s33, s33, {p}\ns_and_b32 s78, s33, 1\ns_lshl_b32 s78, s78, 2\ns_lshr_b32 s33, s33, 1\ns_lshl_b32 s33, s33, 13\ns_and_b32 s79, s{WAVE}, 2\ns_lshl_b32 s79, s79, 11\ns_add_u32 s33, s33, s79')
        for j2 in range(2):
            r = 20 + 4 * p + 2 * j2
            a(f'v_xor_b32 v19, s78, v17\nv_xor_b32 v19, {2*j2}, v19\nv_lshl_add_u32 v{r}, v19, 4, v18\nv_add_u32 v{r}, s33, v{r}\nv_xor_b32 v{r+1}, 4096, v{r}')
    a('s_waitcnt vmcnt(0)\ns_barrier')
    for i in range(9):
        for e in range(4):
            for j2 in range(2): a(f'ds_read_b64 {WQ2(i,e,j2)}, v{20+4*(i&1)+2*j2+(e>>1)} offset:{(i>>1)*8192+(e&1)*2048}')
        if i % 2 == 1: a('s_waitcnt lgkmcnt(0)')
    a('s_waitcnt lgkmcnt(0)\ns_barrier')
    mm(True)
    a('s_branch L_kq2\nL_vo:')
    a.srd(S_A, P_WOC, 1152 * 2304)
    strip_dma_addr(a, 4, 2304, 16, 17)
    a(f's_mul_i32 s60, s{WAVE}, {288*2304}\ns_lshl_b32 s61, s69, 7\ns_add_u32 s60, s60, s61')
    for q in range(9): a.dma4(4, 4, S_A, 60, q * 32 * 2304, q * 4096, flags='')
    common()
    a(f's_and_b32 s78, s{WAVE}, 2')
    tr_addrs(a, 20, 78, 17, 18, 19)
    a('s_waitcnt vmcnt(0)')
    for i in range(9):
        for e in range(4):
            for j2 in range(2): a(f'ds_read_b64_tr_b16 {WQ2(i,e,j2)}, v{20+e} offset:{i*4096+j2*2048}')
        if i % 2 == 1: a('s_waitcnt lgkmcnt(0)')
    a('s_waitcnt lgkmcnt(0)')
    mm(False)
    a('L_kq2:\ns_nop 7')
    a.stamp(5)
    reduce4(a, 10, OWN, lambda sg, m: (sg - 1) * 40 + 4 * m, 72)
    a(f's_cmp_ge_u32 s{SS}, 18\ns_cselect_b32 s69, 18, 0\ns_sub_u32 s69, s{SS}, s69')
    a(f's_and_b32 s33, s{WAVE}, 1\ns_mul_i32 s71, s33, 72\ns_lshl_b32 s33, s69, 2\ns_add_u32 s71, s71, s33\ns_and_b32 s33, s{WAVE}, 2\ns_add_u32 s71, s71, s33\ns_mul_i32 s71, s71, 2560\ns_add_u32 s71, s71, s70\ns_add_u32 s71, s71, {WS_KQ}')
    a('v_lshlrev_b32 v11, 3, v1')
    for e in range(2):
        P = 200 + 12 * e
        for kb in range(5):
            R = OWN + 8 * kb + 4 * e
            for i in range(2): a(f'v_cvt_pk_bf16_f32 v{P+2*kb+i}, v{R+2*i}, v{R+2*i+1}')
        a(f'buffer_store_dwordx4 {vr(P,4)}, v10, {WSR}, s71 offen sc1\nbuffer_store_dwordx4 {vr(P+4,4)}, v10, {WSR}, s71 offen offset:1024 sc1\nbuffer_store_dwordx2 {vr(P+8,2)}, v11, {WSR}, s71 offen offset:2048 sc1\ns_add_u32 s71, s71, 2560')
    a(f's_add_u32 s78, s{SS}, {F_KQVO}')
    flag2(a, 78, 16)
    a.stamp(6)
    a('s_branch L_fin\nL_help:')
    a.vm = a.gtok
    get_nonce(a); sels(a)
    a('s_branch L_s3s')

def main(a):
    a.late = True
    a(f's_cmp_ge_u32 s{JJ}, 26\ns_cbranch_scc1 L_idle\ns_cmp_ge_u32 s{JJ}, 18\ns_cbranch_scc1 L_s3s')
    WF = lambda i, c: 96 + 16 * i + 4 * c
    VF = lambda i, kb: vr(64 + (i * 4 + kb) * 4, 4)
    AC = lambda kb, c: (vr(OWN + 4 * kb, 4) if c == 0 else ar((c - 1) * 16 + 4 * kb, 4))
    a(f's_lshr_b32 s60, s{XCD}, 1\ns_lshl_b32 s60, s60, 1\ns_and_b32 s33, s{JJ}, 1\ns_add_u32 s60, s60, s33\ns_and_b32 s61, s{XCD}, 1\ns_mul_i32 s61, s61, 9\ns_lshr_b32 s33, s{JJ}, 1\ns_add_u32 s61, s61, s33')
    a.srd(S_A, P_WO, 1152 * 2304)
    strip_dma_addr(a, 4, 2304, 16, 17)
    a(f's_mul_i32 s62, s{WAVE}, {288*2304}\ns_lshl_b32 s33, s61, 7\ns_add_u32 s62, s62, s33')
    for q in range(9): a.dma4(4, 4, S_A, 62, q * 32 * 2304, q * 4096, flags='')
    tr_addrs(a, 20, WAVE, 17, 18, 19)
    l16(a, 28)
    a(f's_mul_i32 s64, s60, {4*36864}\ns_mul_i32 s33, s{WAVE}, 9216\ns_add_u32 s64, s64, s33\ns_add_u32 s64, s64, {WS_QKV+2*0x120000}')
    for kb in range(1, 4): a(f's_add_u32 s{64+kb}, s64, {kb*36864}')
    a(f'v_min_u32 v16, 8, v1\nv_lshlrev_b32 v16, 3, v16\nv_add_u32 v16, s60, v16\nv_lshlrev_b32 v16, 7, v16\nv_add_u32 v16, {WS_FLAG+144*128}, v16')
    for i in range(9):
        a(f's_waitcnt vmcnt({32-4*i})')
        for c in range(4):
            for j2 in range(2): a(f'ds_read_b64_tr_b16 {ar(WF(i,c)+2*j2,2)}, v{20+c} offset:{i*4096+j2*2048}')
    a.stamp(9)
    a.poll_flags(16, 17)
    a.stamp(10)
    tok = {}
    for i in range(9):
        for kb in range(4): fload(a, VF(i,kb), i, 28, 64 + kb)
        tok[i] = a.vmtok()
    a(f's_lshr_b32 s33, s60, 2\ns_mul_i32 s70, s33, 72\ns_lshl_b32 s33, s61, 2\ns_add_u32 s70, s70, s33\ns_add_u32 s70, s70, s{WAVE}\ns_lshl_b32 s70, s70, 3\ns_and_b32 s33, s60, 3\ns_lshl_b32 s33, s33, 1\ns_add_u32 s70, s70, s33\ns_lshl_b32 s70, s70, 10\ns_add_u32 s70, s70, {WS_VWO}')
    a(f's_mul_i32 s71, s60, 18\ns_add_u32 s71, s71, s61\ns_add_u32 s71, s71, {F_VWO}\ns_waitcnt lgkmcnt(0)')
    for i in range(9):
        a.wvm(tok[i])
        for kb in range(4):
            for c in range(4): a(mf32(AC(kb,c), VF(i,kb), ar(WF(i,c),4), AC(kb,c) if i else 0))
    reduce4(a, 4, OWN, lambda sg, m: (sg - 1) * 16 + 4 * m, 64)
    for m in range(2):
        for i in range(4): a(f'v_cvt_pk_bf16_f32 v{120+4*m+i}, v{OWN+8*m+2*i}, v{OWN+8*m+2*i+1}')
        a(f'buffer_store_dwordx4 {vr(120+4*m,4)}, v10, {WSR}, s70 offen offset:{1024*m} sc1')
    a('s_branch L_s3e\nL_s3s:')
    a(f's_sub_u32 s33, s{JJ}, 18\ns_and_b32 s60, s33, 1\ns_lshr_b32 s61, s33, 1\ns_and_b32 s33, s{XCD}, 6\ns_add_u32 s60, s60, s33\ns_and_b32 s33, s{XCD}, 1\ns_lshl_b32 s33, s33, 2\ns_add_u32 s61, s61, s33')
    a(f's_and_b32 s33, s{XCD}, 4\ns_lshr_b32 s62, s61, 1\ns_add_u32 s62, s62, s33')
    l16(a, 28)
    a(f's_mul_i32 s63, s{WAVE}, 9216\ns_add_u32 s63, s63, {WS_QKV}')
    for c in range(4): a(f's_xor_b32 s33, s{WAVE}, {c}\ns_lshl_b32 s32, s60, 2\ns_add_u32 s33, s33, s32\ns_mul_i32 s33, s33, 36864\ns_add_u32 s{64+c}, s33, s63')
    a(f's_and_b32 s33, s{XCD}, 4\ns_lshl_b32 s33, s33, 1\ns_add_u32 s33, s33, s61\ns_mul_i32 s33, s33, {2*36864}\ns_add_u32 s68, s33, s63\ns_add_u32 s68, s68, 0x120000\ns_add_u32 s69, s68, 36864')
    a(f'v_min_u32 v16, 17, v1\nv_cmp_gt_u32 vcc, 9, v16\nv_mov_b32 v17, s62\nv_mov_b32 v18, s60\nv_cndmask_b32 v17, v17, v18, vcc\nv_lshl_add_u32 v16, v16, 3, v17\nv_lshlrev_b32 v16, 7, v16\nv_add_u32 v16, {WS_FLAG}, v16')
    a(f's_lshl_b32 s70, s60, 2\ns_add_u32 s70, s70, s{WAVE}\ns_lshl_b32 s70, s70, 3\ns_add_u32 s70, s70, s61\ns_lshl_b32 s70, s70, 10\ns_add_u32 s70, s70, {WS_S}')
    a(f's_lshl_b32 s71, s60, 3\ns_add_u32 s71, s71, s61\ns_add_u32 s71, s71, {F_S}\ns_mov_b32 s78, 0x3cf15bef')
    a.stamp(9)
    a.poll_flags(16, 17)
    a.stamp(10)
    KF = lambda i, m: ar(96 + (i * 2 + m) * 4, 4)
    AS = lambda m, c: (vr(OWN + 4 * m, 4) if c == 0 else ar((c - 1) * 8 + 4 * m, 4))
    for i in range(9):
        for m in range(2): fload(a, KF(i,m), i, 28, 68 + m)
        for c in range(4): fload(a, VF(i,c), i, 28, 64 + c)
        tok[i] = a.vmtok()
    for i in range(9):
        a.wvm(tok[i])
        for m in range(2):
            for c in range(4): a(mf32(AS(m,c), KF(i,m), VF(i,c), AS(m,c) if i else 0))
    reduce4(a, 2, OWN, lambda sg, m: (sg - 1) * 8 + 4 * m, 64)
    for i in range(4): a(f'v_cvt_pk_bf16_f32 v{120+i}, v{OWN+2*i}, v{OWN+2*i+1}')
    for i in range(4): a(f'v_lshlrev_b32 v{OWN+2*i}, 16, v{120+i}\nv_and_b32 v{OWN+2*i+1}, s{MASKHI}, v{120+i}')
    for i in range(8): a(f'v_mul_f32 v{OWN+i}, s78, v{OWN+i}')
    for i in range(4): a(f'v_cvt_pk_bf16_f32 v{120+i}, v{OWN+2*i}, v{OWN+2*i+1}')
    a(f'buffer_store_dwordx4 {vr(120,4)}, v10, {WSR}, s70 offen sc1')
    a('L_s3e:')
    a.stamp(11)
    stage4(a)
    a('s_branch L_fin\nL_idle:')
    a(f's_cmp_lg_u32 s2, {27*8}\ns_cbranch_scc1 L_fin')
    a(f'v_lshlrev_b32 v16, 7, v0\nv_add_u32 v16, {WS_FLAG}, v16'); a.poll_flags(16, 17)
    a(f'v_add_u32 v16, 256, v0\nv_min_u32 v16, 495, v16\nv_lshlrev_b32 v16, 7, v16\nv_add_u32 v16, {WS_FLAG}, v16'); a.poll_flags(16, 17)
    a(f's_mov_b32 s78, {(WS_GEN-WS_FLAG)//128}')
    flag2(a, 78, 16)

def xg(a, op, c, t):
    a(f'v_mov_b32 v{t}, v{c}\nv_permlane32_swap_b32 v{c}, v{t}\n{op} v{c}, v{c}, v{t}\nv_mov_b32 v{t}, v{c}\nv_permlane16_swap_b32 v{c}, v{t}\n{op} v{c}, v{c}, v{t}')
def tree(a, op3, op2, dst, regs):
    regs = list(regs); first = True
    a(f'{op3} v{dst}, v{regs[0]}, v{regs[1]}, v{regs[2]}'); k = 3
    while k + 1 < len(regs): a(f'{op3} v{dst}, v{dst}, v{regs[k]}, v{regs[k+1]}'); k += 2
    if k < len(regs): a(f'{op2} v{dst}, v{dst}, v{regs[k]}')
L_P, L_ML, L_R, L_SUM = 0, 8192, 16384, 49152
def tagcheck(a, tags, T):
    a(f'v_xor_b32 v{T}, s{NONCE}, v{tags[0]}\nv_xor_b32 v{T+1}, s{NONCE}, v{tags[1]}')
    for i in range(2, len(tags), 2): a(f'v_xor_b32 v{T+2}, s{NONCE}, v{tags[i]}\nv_xor_b32 v{T+3}, s{NONCE}, v{tags[i+1]}\nv_or3_b32 v{T+(i//2&1)}, v{T+(i//2&1)}, v{T+2}, v{T+3}')
    a(f'v_or_b32 v{T}, v{T}, v{T+1}\nv_cmp_ne_u32 vcc, 0, v{T}')
def gpoll(a, loads, tags, T):
    L = a.lab('gp'); E = a.lab('ge')
    a(f's_mov_b32 s33, {SPIN}\n{L}:'); loads(); a('s_waitcnt vmcnt(0)')
    tagcheck(a, tags, T)
    a(f's_sub_u32 s33, s33, 1\ns_cmp_eq_u32 s33, 0\ns_cbranch_scc1 {E}\ns_nop 1\ns_cbranch_vccnz {L}\n{E}:')
def stage4(a):
    GATE, XR, X1, T = 40, 228, 234, 240
    flag2(a, 71, 16)
    a(f's_cmp_ge_u32 s{JJ}, 24\ns_cbranch_scc1 L_fin')
    a(f's_lshr_b32 s60, s{XCD}, 1\ns_lshl_b32 s60, s60, 3\ns_and_b32 s33, s{JJ}, 7\ns_add_u32 s60, s60, s33\ns_and_b32 s61, s{XCD}, 1\ns_mul_i32 s61, s61, 3\ns_lshr_b32 s33, s{JJ}, 3\ns_add_u32 s61, s61, s33\ns_lshr_b32 s62, s{XCD}, 2')
    a(f's_mul_i32 s63, s61, 12\ns_mul_i32 s33, s{WAVE}, 3\ns_add_u32 s63, s63, s33')
    a.srd(S_A, P_X, 512 * 2304); a.srd(S_B, P_OUT, 512 * 2304)
    a(f'v_and_b32 v6, 15, v1\nv_mul_u32_u24 v4, 2304, v6\nv_lshrrev_b32 v7, 4, v1\nv_lshl_add_u32 v4, v7, 3, v4\nv_lshlrev_b32 v5, 4, v7\nv_lshlrev_b32 v11, 3, v1')
    a(f's_mul_i32 s64, s60, {16*2304}\ns_lshl_b32 s33, s63, 5\ns_add_u32 s64, s64, s33')
    for c in range(3): a(f'buffer_load_dwordx2 {vr(XR+2*c,2)}, v4, s[{S_A}:{S_A+3}], s64 offen offset:{32*c}')
    l16(a, 28)
    a(f's_mul_i32 s65, s62, 13824\ns_lshl_b32 s33, s63, 6\ns_add_u32 s65, s65, s33\ns_add_u32 s65, s65, {576*16}')
    GP = lambda c, p: 64 + 16 * c + 4 * p
    def gl():
        for p in range(4):
            a(f's_add_u32 s32, s65, {p*27648}')
            for c in range(3): a(f'buffer_load_dwordx4 {vr(GP(c,p),4)}, v5, {WSR}, s32 offen offset:{64*c} sc1')
    a(f's_lshr_b32 s33, s60, 2\ns_lshl_b32 s33, s33, 3\ns_add_u32 s33, s33, {F_S}\nv_add_u32 v16, s33, v1')
    a(f's_mul_i32 s66, s61, 3\ns_mul_i32 s33, s62, 72\ns_add_u32 s33, s33, s66\ns_add_u32 s33, s33, {F_VWO}\nv_subrev_u32 v17, 8, v1\nv_and_b32 v18, 3, v17\nv_mul_u32_u24 v18, 18, v18\nv_lshrrev_b32 v17, 2, v17\nv_add3_u32 v17, v17, v18, s33')
    a(f'v_cmp_gt_u32 vcc, 8, v1\nv_cndmask_b32 v16, v17, v16, vcc\ns_add_u32 s33, s66, {F_KQVO-20}\nv_min_u32 v17, 25, v1\nv_add_u32 v17, s33, v17\nv_add_u32 v18, 15, v17\nv_cmp_gt_u32 vcc, 23, v1\nv_cndmask_b32 v17, v18, v17, vcc')
    a(f'v_cmp_gt_u32 vcc, 20, v1\nv_cndmask_b32 v16, v17, v16, vcc\nv_lshlrev_b32 v16, 7, v16\nv_add_u32 v16, {WS_FLAG}, v16')
    for kb in range(5): a(f'v_cmp_eq_u32 vcc, {kb}, v6\nv_mov_b32 v{53+2*kb}, 0x3f803f80\nv_cndmask_b32 v{52+2*kb}, 0, v{53+2*kb}, vcc\nv_mov_b32 v{53+2*kb}, v{52+2*kb}')
    a(f's_lshl_b32 s66, s60, 13\ns_lshl_b32 s33, s{WAVE}, 11\ns_add_u32 s66, s66, s33\ns_add_u32 s66, s66, {WS_S}')
    a(f's_mul_i32 s33, s62, 72\ns_add_u32 s33, s33, s63\ns_lshl_b32 s67, s33, 13\ns_add_u32 s67, s67, {WS_VWO}\ns_mul_i32 s68, s33, 2560\ns_add_u32 s68, s68, {WS_KQ}\ns_add_u32 s69, s68, 0x5A000')
    a(f's_mul_i32 s71, s60, 36864\ns_add_u32 s71, s71, {WS_SC}\ns_mul_i32 s70, s61, 6144\ns_add_u32 s70, s70, s71')
    a(f's_lshl_b32 s33, s{WAVE}, 11\nv_add_u32 v8, s33, v28\ns_lshl_b32 s33, s{WAVE}, 9\nv_add_u32 v9, s33, v11')
    a(f's_mul_i32 s33, s{WAVE}, 6144\nv_add_u32 v12, s33, v28')
    a(f'v_lshrrev_b32 v13, 2, v6\nv_lshlrev_b32 v13, 8, v13\nv_and_b32 v14, 3, v1\nv_lshl_add_u32 v13, v14, 2, v13\nv_add_u32 v13, {5*1024+128}, v13')
    a(f'v_lshrrev_b32 v14, 5, v1\nv_lshl_add_u32 v14, v14, 4, v13\nv_add_u32 v14, s33, v14')
    a(f's_lshl_b32 s78, s{WAVE}, 10\ns_add_u32 s33, s{WAVE}, 4\ns_min_u32 s79, s33, 5\ns_lshl_b32 s79, s79, 10\nv_add_u32 v18, s78, v28\nv_add_u32 v19, s79, v28\nv_add_u32 v15, 4096, v18')
    a(f's_cmp_lt_u32 s{WAVE}, 2\ns_cselect_b32 s33, 0, 0x7f000000\nv_add_u32 v20, s33, v19\nv_lshlrev_b32 v21, 8, v7\nv_cmp_eq_u32 vcc, 3, v7\nv_mov_b32 v22, 0xff800000\nv_cndmask_b32 v22, 0, v22, vcc')
    gpoll(a, gl, [GP(c, p) + 3 for c in range(3) for p in range(4)], T)
    for c in range(3):
        for p in range(4): a.emit(unpack4(GP(c, p), T + p))
        b = GP(c, 0); g = GATE + 4 * c
        for i in range(4): a(f'v_add_f32 v{b+i}, v{b+i}, v{b+4+i}\nv_add_f32 v{b+8+i}, v{b+8+i}, v{b+12+i}')
        for i in range(4): a(f'v_add_f32 v{b+i}, v{b+i}, v{b+8+i}')
        a(f'v_cvt_pk_bf16_f32 v{b}, v{b}, v{b+1}\nv_cvt_pk_bf16_f32 v{b+2}, v{b+2}, v{b+3}\nv_and_b32 v{g+1}, s{MASKHI}, v{b}\nv_lshlrev_b32 v{g}, 16, v{b}\nv_and_b32 v{g+3}, s{MASKHI}, v{b+2}\nv_lshlrev_b32 v{g+2}, 16, v{b+2}')
    XF = 216
    for i in range(6): a(f'v_lshlrev_b32 v{XF+2*i}, 16, v{XR+i}\nv_and_b32 v{XF+2*i+1}, s{MASKHI}, v{XR+i}')
    a.stamp(12)
    a.poll_flags(16, 17)
    a.stamp(13)
    for u in range(2): a(f'buffer_load_dwordx4 {vr(160+4*u,4)}, v28, {WSR}, s66 offen offset:{1024*u} sc1')
    stok = a.vmtok()
    VW = lambda c, u: vr(64 + (c * 8 + u) * 4, 4)
    vt = {}
    for c in range(3):
        for u in range(8): fload(a, VW(c,u), u, 28, 67)
        a('s_add_u32 s67, s67, 8192'); vt[c] = a.vmtok()
    for k, (so, base) in enumerate(((68, 32), (69, 64))):
        for c in range(3):
            r = base + 10 * c
            a(f'buffer_load_dwordx4 {ar(r,4)}, v28, {WSR}, s{so} offen sc1\nbuffer_load_dwordx4 {ar(r+4,4)}, v28, {WSR}, s{so} offen offset:1024 sc1\nbuffer_load_dwordx2 {ar(r+8,2)}, v11, {WSR}, s{so} offen offset:2048 sc1\ns_add_u32 s{so}, s{so}, 2560')
        vt['kv' + str(k)] = a.vmtok()
    a.wvm(stok)
    E = 168
    for i in range(8): a(f'v_lshlrev_b32 v{E+2*i}, 16, v{160+i}\nv_and_b32 v{E+2*i+1}, s{MASKHI}, v{160+i}')
    tree(a, 'v_max3_f32', 'v_max_f32', 24, range(E, E + 16))
    xg(a, 'v_max_f32', 24, 25)
    a(f'v_mul_f32 v24, {LOG2E}, v24\ns_mov_b32 s78, {LOG2E}')
    for i in range(16): a(f'v_fma_f32 v{E+i}, v{E+i}, s78, -v24')
    for i in range(16): a(f'v_exp_f32 v{E+i}, v{E+i}')
    for i in range(8): a(f'v_cvt_pk_bf16_f32 v{160+i}, v{E+2*i}, v{E+2*i+1}')
    a(f'ds_write_b128 v8, v[160:163] offset:{L_P}\nds_write_b128 v8, v[164:167] offset:{L_P+1024}')
    for st in (8, 4, 2):
        for i in range(st): a(f'v_add_f32 v{E+i}, v{E+i}, v{E+st+i}')
    a(f'v_add_f32 v25, v{E}, v{E+1}')
    xg(a, 'v_add_f32', 25, 26)
    a(f'ds_write_b64 v9, v[24:25] offset:{L_ML}\ns_waitcnt lgkmcnt(0)\ns_barrier')
    for w in range(4): a(f'ds_read_b64 {vr(T+2*w,2)}, v11 offset:{L_ML+512*w}')
    for u in range(8): a(f'ds_read_b128 {ar(4*u,4)}, v28 offset:{L_P+1024*u}')
    a('s_waitcnt lgkmcnt(8)')
    a(f'v_max3_f32 v24, v{T}, v{T+2}, v{T+4}\nv_max_f32 v24, v24, v{T+6}')
    for w in range(4): a(f'v_sub_f32 v{T+2*w}, v{T+2*w}, v24')
    for w in range(4): a(f'v_exp_f32 v{T+2*w}, v{T+2*w}')
    a(f'v_mul_f32 v25, v{T}, v{T+1}')
    for w in range(1, 4): a(f'v_fma_f32 v25, v{T+2*w}, v{T+2*w+1}, v25')
    a('v_rcp_f32 v25, v25')
    for w in range(4): a(f'v_mul_f32 v{T+2*w}, v{T+2*w}, v25')
    a('s_waitcnt lgkmcnt(0)')
    AP = lambda c, w: 168 + (c * 4 + w) * 4 if c < 3 else None
    for c in range(3):
        a.wvm(vt[c])
        for h in range(2):
            for w in range(4): a(mf32(vr(AP(c,w),4), VW(c,2*w+h), ar(4*(2*w+h),4), vr(AP(c,w),4) if h else 0))
    assert AP(2, 3) + 4 <= XF
    for c in range(3):
        b = AP(c, 0)
        for i in range(4): a(f'v_mul_f32 v{b+i}, v{b+i}, v{T}')
        for w in range(1, 4):
            for i in range(4): a(f'v_fma_f32 v{b+i}, v{AP(c,w)+i}, v{T+2*w}, v{b+i}')
        for i in range(4): a(f'v_fma_f32 v{b+i}, v{b+i}, v{GATE+4*c+i}, v{XF+4*c+i}')
        for i in range(2): a(f'v_cvt_pk_bf16_f32 v{X1+2*c+i}, v{b+2*i}, v{b+2*i+1}')
    a.wvm(vt['kv0'])
    SC = lambda kb: vr(64 + 4 * kb, 4)
    for c in range(3):
        for kb in range(5): a(mf16(SC(5), ar(32+10*c+2*kb,2), vr(52+2*kb,2), SC(5) if c + kb else 0) + '\n' + mf16(SC(kb), ar(32+10*c+2*kb,2), vr(X1+2*c,2), SC(kb) if c else 0))
    a('s_mov_b32 s78, 0x3f803f80\nv_mov_b32 v24, 0\nv_mov_b32 v25, 0')
    for i in range(6): a(f'v_dot2_f32_bf16 v24, v{X1+i}, s78, v24\nv_dot2_f32_bf16 v25, v{X1+i}, v{X1+i}, v25')
    a('v_permlane32_swap_b32 v24, v25\nv_add_f32 v24, v24, v25\nv_mov_b32 v25, v24\nv_permlane16_swap_b32 v24, v25\nv_add_f32 v24, v24, v25')
    for u in range(6): a(f'ds_write_b128 v12, {SC(u)} offset:{L_R+1024*u}')
    a(f'ds_write_b32 v14, v24 offset:{L_R}\ns_waitcnt lgkmcnt(0)\ns_barrier')
    for q in range(2):
        for w in range(4): a(f'ds_read_b128 {vr(96+16*q+4*w,4)}, v{18+q} offset:{L_R+6144*w}')
    for q in range(2):
        a(f's_waitcnt lgkmcnt({4-4*q})')
        b = 96 + 16 * q
        for i in range(4): a(f'v_add_f32 v{b+i}, v{b+i}, v{b+4+i}\nv_add_f32 v{b+8+i}, v{b+8+i}, v{b+12+i}')
        for i in range(4): a(f'v_add_f32 v{b+i}, v{b+i}, v{b+8+i}')
        pack4(a, b)
        a(f'buffer_store_dwordx4 {vr(b,4)}, v{(18,20)[q]}, {WSR}, s70 offen sc1')
    a.stamp(14)
    PP = lambda q, p: 128 + (q * 6 + p) * 4
    def pl():
        for p in range(6):
            a(f's_add_u32 s32, s71, {p*6144}')
            for q in range(2): a(f'buffer_load_dwordx4 {vr(PP(q,p),4)}, v{18+q}, {WSR}, s32 offen sc1')
    for i in range(6): a(f'v_lshlrev_b32 v{XF+2*i}, 16, v{X1+i}\nv_and_b32 v{XF+2*i+1}, s{MASKHI}, v{X1+i}')
    gpoll(a, pl, [PP(q, p) + 3 for q in range(2) for p in range(6)], T)
    a.stamp(15)
    for q in range(2):
        for p in range(6): a.emit(unpack4(PP(q, p), T + (p & 3)))
        b = PP(q, 0)
        for i in range(4): a(f'v_add_f32 v{b+i}, v{b+i}, v{b+4+i}\nv_add_f32 v{b+8+i}, v{b+8+i}, v{b+12+i}\nv_add_f32 v{b+16+i}, v{b+16+i}, v{b+20+i}')
        for i in range(4): a(f'v_add_f32 v{b+i}, v{b+i}, v{b+8+i}')
        for i in range(4): a(f'v_add_f32 v{b+i}, v{b+i}, v{b+16+i}')
        a(f'ds_write_b128 v{(18,15)[q]}, {vr(b,4)} offset:{L_SUM}')
    a('s_waitcnt lgkmcnt(0)\ns_barrier')
    a(f'ds_read_b32 v24, v13 offset:{L_SUM}\nds_read_b32 v25, v13 offset:{L_SUM+16}')
    Z, CS = 64, 96
    for kb in range(5): a(f'ds_read_b128 {vr(CS+4*kb,4)}, v21 offset:{L_SUM+5120+16*kb}\nds_read_b128 {vr(Z+4*kb,4)}, v28 offset:{L_SUM+1024*kb}')
    a('s_waitcnt lgkmcnt(10)')
    inv = '0x3a638e39'
    a(f'v_mul_f32 v24, {inv}, v24\nv_mul_f32 v25, {inv}, v25\nv_fma_f32 v25, -v24, v24, v25\nv_max_f32 v25, 0, v25\nv_add_f32 v25, 0x3727c5ac, v25\nv_rsq_f32 v25, v25\nv_mul_f32 v25, 0x3d2e1a93, v25')
    for kb in range(5):
        a(f's_waitcnt lgkmcnt({8-2*kb})')
        for i in range(4): a(f'v_fma_f32 v{Z+4*kb+i}, -v24, v{CS+4*kb+i}, v{Z+4*kb+i}')
    for i in range(20): a(f'v_mul_f32 v{Z+i}, v{Z+i}, v25' if i < 17 else f'v_fma_f32 v{Z+i}, v{Z+i}, v25, v22')
    tree(a, 'v_max3_f32', 'v_max_f32', 24, range(Z, Z + 20))
    xg(a, 'v_max_f32', 24, 25)
    for i in range(20): a(f'v_sub_f32 v{Z+i}, v{Z+i}, v24')
    for i in range(20): a(f'v_exp_f32 v{Z+i}, v{Z+i}')
    for i in range(10): a(f'v_add_f32 v{CS+i}, v{Z+i}, v{Z+10+i}')
    for i in range(5): a(f'v_add_f32 v{CS+i}, v{CS+i}, v{CS+5+i}')
    a(f'v_add_f32 v{CS}, v{CS}, v{CS+1}\nv_add_f32 v{CS+2}, v{CS+2}, v{CS+3}\nv_add_f32 v24, v{CS}, v{CS+4}\nv_add_f32 v24, v24, v{CS+2}')
    xg(a, 'v_add_f32', 24, 25)
    a('v_rcp_f32 v24, v24')
    for i in range(20): a(f'v_mul_f32 v{Z+i}, v{Z+i}, v24')
    for i in range(10): a(f'v_cvt_pk_bf16_f32 v{CS+i}, v{Z+2*i}, v{Z+2*i+1}')
    O = 128
    for c in range(3): a(mf32(vr(O+4*c,4), ar(64+10*c,4), vr(CS,4), 0))
    for c in range(3): a(mf32(vr(O+4*c,4), ar(68+10*c,4), vr(CS+4,4), vr(O+4*c,4)))
    for c in range(3): a(mf16(vr(O+4*c,4), ar(72+10*c,2), vr(CS+8,2), vr(O+4*c,4)))
    for c in range(3):
        b = O + 4 * c
        a(f'v_cvt_pk_bf16_f32 v{b}, v{b}, v{b+1}\nv_cvt_pk_bf16_f32 v{b+2}, v{b+2}, v{b+3}\nv_and_b32 v{b+1}, s{MASKHI}, v{b}\nv_lshlrev_b32 v{b}, 16, v{b}\nv_and_b32 v{b+3}, s{MASKHI}, v{b+2}\nv_lshlrev_b32 v{b+2}, 16, v{b+2}')
        for i in range(4): a(f'v_add_f32 v{b+i}, v{b+i}, v{XF+4*c+i}')
        a(f'v_cvt_pk_bf16_f32 v{b}, v{b}, v{b+1}\nv_cvt_pk_bf16_f32 v{b+1}, v{b+2}, v{b+3}')
        a(f'buffer_store_dwordx2 {vr(b,2)}, v4, s[{S_B}:{S_B+3}], s64 offen offset:{32*c}')
    a.stamp(7)
PH = {'main': main, 'side': side}
def build(prof=False, opt=None): return gen.build(prof, opt, PH)
if __name__ == '__main__':
    opt = eval(sys.argv[1]) if len(sys.argv) > 1 else {}
    open('standalone__pixart__diffusion.s', 'w').write(build(False, opt))
```

```python
import sys; sys.path.insert(0, 'work')
from fw import *
NAME = 'standalone__pixart__diffusion_kernel'
WS_GEN = 0x1C000
WS_MOD = 0
WS_FLAG = 0x20000
F_QKV, F_KVC, F_VWO, F_S, F_KQVO = 0, 216, 252, 396, 460
WS_PROF = 0x80000
WS_QKV = 0x100000
WS_KVC = 0x500000
WS_VWO = 0x600000
WS_S = 0x740000
WS_KQ = 0x780000
WS_SC = 0x840000
WS_H = 0xA00000
F_H = 512
WS_SIZE = 0xC00000
RING = 36864
L_SCALE = 147456; L_SHIFT = 152064; L_STATS = 156672; L_SILU = 158720; L_MODRED = 163328
S_WS = 4; S_A = 8; S_B = 12; S_C = 16; S_D = 20
NONCE, WAVE, XCD, JJ, TT, CT, RT, RB = 24, 25, 26, 27, 28, 29, 30, 31
P_X, P_C, P_Y, P_WQKV, P_WO, P_WQC, P_WKV, P_WOC, P_WMOD, P_OUT, P_DBG, P_WS = 36, 38, 40, 42, 44, 46, 48, 50, 52, 54, 56, 58
MASKHI = 100
SPIN = 20000
class G(Asm):
    def __init__(s, prof=False, opt=None):
        super().__init__(); s.prof = prof; s.opt = opt or {}; s.late = False
    def o(s, k, d): return s.opt.get(k, d)
    def srd(s, d, p, size):
        s(f's_mov_b32 s{d}, s{p}\ns_mov_b32 s{d+1}, s{p+1}\ns_mov_b32 s{d+2}, {size}\ns_mov_b32 s{d+3}, 0x20000')
    def stamp(s, i):
        if s.prof and (s.o('pa', 0) != 0) != (s.late or i in (0, 2, 6, 8)) or (s.prof and not s.late and i in (0, 2, 6, 8)): s(f's_memrealtime s[34:35]\ns_waitcnt lgkmcnt(0)\ns_mov_b32 s{80+i}, s34')
    def dma(s, va, srd, sbase, soff, lds, flags='nt', ldsbase=RB):
        s(f's_add_u32 m0, s{ldsbase}, {lds}\ns_add_u32 s32, s{sbase}, {soff}\nbuffer_load_dwordx4 v{va}, s[{srd}:{srd+3}], s32 offen {flags} lds')
    def dma4(s, va, n, srd, sbase, soff, lds, flags='nt', ldsbase=RB, i0=0):
        s(f's_add_u32 m0, s{ldsbase}, {lds}\ns_add_u32 s32, s{sbase}, {soff}')
        for i in range(i0, i0 + n): s(f'buffer_load_dwordx4 v{va+i}, s[{srd}:{srd+3}], s32 offen offset:{1024*i} {flags} lds')
    def emit(s, items):
        for it in items:
            if callable(it): it()
            else: s(it)
    def flush_prof(s):
        if not s.prof: return
        s('s_waitcnt vmcnt(0) lgkmcnt(0)')
        for q in range(4):
            for i in range(4): s(f'v_mov_b32 v{4+i}, s{80+4*q+i}')
            s(f's_lshl_b32 s32, s2, 8\ns_lshl_b32 s33, s{WAVE}, 6\ns_add_u32 s32, s32, s33\ns_add_u32 s32, s32, {WS_PROF + 16*q}')
            s(f'v_mov_b32 v3, 0\nbuffer_store_dwordx4 v[4:7], v3, s[{S_WS}:{S_WS+3}], s32 offen\ns_waitcnt vmcnt(0)')
    def poll_flags(s, vaddr, vtmp):
        L = s.lab('poll'); E = s.lab('pe')
        s(f's_mov_b32 s33, {SPIN}\n{L}:')
        s(f'buffer_load_dword v{vtmp}, v{vaddr}, s[{S_WS}:{S_WS+3}], 0 offen sc1\ns_waitcnt vmcnt(0)')
        s(f'v_cmp_ne_u32 vcc, s{NONCE}, v{vtmp}\ns_sub_u32 s33, s33, 1\ns_cmp_eq_u32 s33, 0\ns_cbranch_scc1 {E}\ns_nop 1\ns_cbranch_vccnz {L}\n{E}:')
    def set_flag(s, sidx, vt):
        s(f's_waitcnt vmcnt(0)\ns_barrier')
        s(f's_lshl_b32 s32, s{sidx}, 7\ns_add_u32 s32, s32, {WS_FLAG}')
        s(f'v_cmp_eq_u32 vcc, 0, v0\nv_mov_b32 v{vt}, 0x7fffffff\nv_cndmask_b32 v{vt}, v{vt}, 0, vcc\nv_mov_b32 v{vt+1}, s{NONCE}')
        s(f'buffer_store_dword v{vt+1}, v{vt}, s[{S_WS}:{S_WS+3}], s32 offen sc1')

def prologue(a):
    a(f's_cmp_ge_u32 s2, 256\ns_cbranch_scc1 L_end')
    a('s_load_dwordx16 s[36:51], s[0:1], 0\ns_load_dwordx8 s[52:59], s[0:1], 64')
    a.stamp(0)
    if a.prof and a.o('pa', 0): a('s_memtime s[34:35]\ns_waitcnt lgkmcnt(0)\ns_mov_b32 s94, s34')
    a(f'v_lshrrev_b32 v2, 6, v0\nv_and_b32 v1, 63, v0\nv_readfirstlane_b32 s{WAVE}, v2')
    a(f's_and_b32 s{XCD}, s2, 7\ns_lshr_b32 s{JJ}, s2, 3\ns_mov_b32 s{MASKHI}, 0xffff0000')
    a(f's_mul_i32 s{RB}, s{WAVE}, {RING}')
    if a.o('cw', 0):
        a(f's_getpc_b64 s[60:61]\nL_pc:\nv_lshlrev_b32 v4, 8, v0\nv_mov_b32 v5, 0\nv_min_u32 v4, L_end-L_pc-128, v4\nv_lshl_add_u64 v[4:5], v[4:5], 0, s[60:61]')
        a('global_load_dword v255, v[4:5], off nt\nglobal_load_dword v255, v[4:5], off offset:128 nt')
    a('s_waitcnt lgkmcnt(0)')
    a.srd(S_WS, P_WS, WS_SIZE)
    a(f'v_mov_b32 v2, {WS_GEN}\nbuffer_load_dword v3, v2, s[{S_WS}:{S_WS+3}], 0 offen sc1')
    a.gtok = a.vmtok()
def get_nonce(a):
    a.wvm(a.gtok)
    a(f'v_readfirstlane_b32 s{NONCE}, v3\ns_mul_i32 s{NONCE}, s{NONCE}, 0x9E3779B1\ns_add_u32 s{NONCE}, s{NONCE}, 0x7F4A7C15')

def strip_dma_addr(a, d, stride, t0, t1):
    a(f'v_lshrrev_b32 v{t0}, 3, v1\nv_mul_u32_u24 v{t0}, {stride}, v{t0}\nv_lshrrev_b32 v{t1}, 4, v1\nv_lshlrev_b32 v{t1}, 1, v{t1}\nv_and_b32 v{d}, 7, v1\nv_xor_b32 v{t1}, v{t1}, v{d}\nv_lshl_add_u32 v{d}, v{t1}, 4, v{t0}')
    for i in range(1, 4): a(f'v_add_u32 v{d+i}, {i*(8*stride-1024)}, v{d}')
def strip_tr_base(a, d, t0, t1, slotstride=1024):
    a(f'v_lshrrev_b32 v{t0}, 5, v1\nv_mul_u32_u24 v{d}, {slotstride}, v{t0}\nv_bfe_u32 v{t0}, v1, 2, 3\nv_lshl_add_u32 v{d}, v{t0}, 7, v{d}\nv_lshrrev_b32 v{t1}, 1, v{t0}\nv_and_b32 v{t0}, 3, v1\nv_lshl_add_u32 v{d}, v{t0}, 3, v{d}')
def unpack4(b, t):
    return [f'v_perm_b32 v{t}, v{b+1}, v{b}, s72', f'v_perm_b32 v{b+3}, v{b+2}, v{t}, s73']
def pack4(a, b):
    a(f'v_perm_b32 v{b}, v{b}, v{b+3}, s74\nv_perm_b32 v{b+1}, v{b+1}, v{b+3}, s75\nv_perm_b32 v{b+2}, v{b+2}, v{b+3}, s76\nv_mov_b32 v{b+3}, s{NONCE}')
def sels(a): a('s_mov_b32 s72, 0x0c04000c\ns_mov_b32 s73, 0x04020100\ns_mov_b32 s74, 0x07060501\ns_mov_b32 s75, 0x07060502\ns_mov_b32 s76, 0x07060503')

def phaseA(a):
    X = lambda j, tb: 64 + (j * 2 + tb) * 4
    T = 240; OWN = 32; XS = 208
    ACC = lambda cb, tb: (ar((cb * 2 + tb) * 16, 16) if cb < 3 else vr(OWN + tb * 16, 16))
    WF = lambda j, cb, n=4, o=0: ar(96 + (j % 9) * 16 + cb * 4 + o, n)
    a(f's_mul_i32 s{TT}, s{XCD}, 24\ns_add_u32 s{TT}, s{TT}, s{JJ}\ns_lshl_b32 s33, s{XCD}, 3\ns_add_u32 s33, s33, s{JJ}\ns_add_u32 s33, s33, 168\ns_cmp_lt_u32 s{JJ}, 24\ns_cselect_b32 s{TT}, s{TT}, s33')
    a(f's_lshr_b32 s{CT}, s{TT}, 3\ns_and_b32 s{RT}, s{TT}, 7')
    a.srd(S_B, P_WMOD, 1152 * 13824)
    strip_dma_addr(a, 4, 13824, 8, 9)
    a(f'v_add_u32 v5, {32*13824-1024}, v4\nv_add_u32 v6, {2*(32*13824-1024)}, v4')
    a(f's_and_b32 s60, s{TT}, 3\ns_mul_i32 s61, s60, 36\ns_add_u32 s61, s61, s{WAVE}\ns_mul_i32 s61, s61, {8*13824}\ns_lshr_b32 s62, s{TT}, 2\ns_lshl_b32 s33, s62, 7\ns_add_u32 s61, s61, s33')
    for q in range(3): a.dma4(4, 3, S_B, 61, 96 * q * 13824, (18 + 3 * q) * 1024, flags=a.o('mnt', 'nt'))
    mtok = a.vmtok()
    a.srd(S_A, P_C, 4608); a.srd(S_C, P_X, 512 * 2304)
    a(f's_and_b32 s33, s{WAVE}, 1\ns_mul_i32 s63, s33, 2304\ns_mul_i32 s64, s33, 576\ns_lshr_b32 s33, s{WAVE}, 1\ns_mul_i32 s33, s33, 288\ns_add_u32 s64, s64, s33\ns_add_u32 s63, s63, s33\ns_mul_i32 s33, s60, 576\ns_add_u32 s63, s63, s33')
    a(f'v_lshlrev_b32 v8, 3, v1\nv_min_u32 v8, 280, v8\nbuffer_load_dwordx2 v[240:241], v8, s[{S_A}:{S_A+3}], s63 offen')
    ctok = a.vmtok()
    a(f's_add_u32 s64, s64, {L_SILU}\nv_add_u32 v18, s64, v8')
    a.srd(S_D, P_WQKV, 1152 * 6912)
    a.stamp(13)
    a(f's_lshl_b32 s77, s{XCD}, 1\ns_and_b32 s33, s{JJ}, 1\ns_add_u32 s77, s77, s33\ns_lshr_b32 s78, s{JJ}, 1\ns_cmp_ge_u32 s78, 9\ns_cselect_b32 s33, 9, 0\ns_cselect_b32 s79, 0x7f000000, 0\ns_sub_u32 s78, s78, s33')
    a(f's_mul_i32 s65, s77, {32*2304}\ns_lshl_b32 s33, s78, 8\ns_lshl_b32 s32, s{WAVE}, 6\ns_add_u32 s33, s33, s32\ns_add_u32 s33, s33, s65')
    a('v_and_b32 v9, 31, v1\nv_mul_u32_u24 v9, 2304, v9\nv_lshrrev_b32 v10, 5, v1\nv_lshl_add_u32 v9, v10, 4, v9')
    for u in range(2): a(f'buffer_load_dwordx4 {vr(XS+4*u,4)}, v9, s[{S_C}:{S_C+3}], s33 offen offset:{32*u}')
    a('v_lshrrev_b32 v9, 3, v1\nv_mul_u32_u24 v9, 2304, v9\nv_lshrrev_b32 v10, 4, v1\nv_and_b32 v11, 7, v1')
    a(f'v_xor_b32 v4, v11, v10\nv_xor_b32 v5, 4, v4\nv_lshl_add_u32 v4, v4, 4, v9\nv_lshl_add_u32 v5, v5, 4, v9\nv_add_u32 v5, {8*2304-1024}, v5')
    a(f'v_add_u32 v6, {2*(8*2304-1024)}, v4\nv_add_u32 v7, {2*(8*2304-1024)}, v5')
    a(f's_mul_i32 s60, s{WAVE}, 576\ns_and_b32 s33, s{WAVE}, 1\ns_lshl_b32 s63, s33, 6\ns_add_u32 s63, s63, s60\ns_xor_b32 s33, s33, 1\ns_lshl_b32 s64, s33, 9\ns_add_u32 s64, s64, s60')
    a('s_add_u32 s66, s65, s64\ns_add_u32 s65, s65, s63')
    xtok = {}
    a('v_lshrrev_b32 v9, 2, v1\nv_mul_u32_u24 v9, 2304, v9\nv_and_b32 v11, 3, v1\nv_xor_b32 v8, v11, v10\nv_lshl_add_u32 v8, v8, 4, v9')
    a(f'v_add_u32 v9, {16*2304-1024}, v8')
    def xdma(L):
        if L < 4:
            a(f's_add_u32 s33, s78, {L}\ns_and_b32 s33, s33, 3\ns_lshl_b32 s33, s33, 7\ns_add_u32 s96, s65, s33')
            a.dma4(4, 4, S_C, 96, 0, L * 4096, flags=a.o('xnt', '') if L < a.o('xntn', 1) else '')
        else: a.dma4(8, 2, S_C, 66, 0, 16384, flags='')
        xtok[L] = a.vmtok()
    XE = a.o('xe', 0)
    for L in range(XE): xdma(L)
    a(f's_lshr_b32 s33, s{JJ}, 3\ns_mul_i32 s33, s33, 3\ns_add_u32 s33, s33, s{RT}\ns_lshl_b32 s99, s33, 1\ns_lshr_b32 s33, s{RT}, 2\ns_add_u32 s99, s99, s33\ns_cmp_ge_u32 s99, 18\ns_cselect_b32 s33, 18, 0\ns_sub_u32 s99, s99, s33')
    if not a.o('rot', 1): a('s_mov_b32 s99, 0')
    a(f's_mul_i32 s68, s{WAVE}, {288*6912}\ns_lshl_b32 s33, s{CT}, 8\ns_add_u32 s68, s68, s33\ns_mul_i32 s67, s99, {16*6912}\ns_add_u32 s67, s67, s68\ns_add_u32 s68, s68, {288*6912}')
    a('v_lshrrev_b32 v16, 4, v1\nv_mul_u32_u24 v12, 6912, v16\nv_lshlrev_b32 v16, 2, v16\nv_and_b32 v17, 15, v1\nv_xor_b32 v16, v16, v17\nv_lshl_add_u32 v12, v16, 4, v12')
    for i in range(1, 4): a(f'v_add_u32 v{12+i}, {i*(4*6912-1024)}, v12')
    wtok = {}
    SL = lambda j: (7, 8, 5, 6, 0, 1, 2, 3, 4)[j % 9] * 4096
    WE = a.o('we', 2)
    def wdma(j):
        a(f's_add_u32 m0, s{RB}, {SL(j)}')
        for i in range(4): a(f'buffer_load_dwordx4 v{12+i}, s[{S_D}:{S_D+3}], s67 offen offset:{1024*i} {"nt" if j < a.o("wntn", 2) else ""} lds')
        a(f's_add_u32 s67, s67, {16*6912}\ns_cmp_ge_u32 s67, s68\ns_cselect_b32 s33, {288*6912}, 0\ns_sub_u32 s67, s67, s33')
        wtok[j] = a.vmtok()
    for j in range(WE): wdma(j)
    sels(a)
    a.stamp(9)
    a.wvm(ctok)
    for i in range(2):
        r = 240 + i; t0, t1 = 244 + 4 * i, 245 + 4 * i; u0, u1 = t0 + 2, t0 + 3
        a.emit([f'v_lshlrev_b32 v{t0}, 16, v{r}', f'v_and_b32 v{t1}, s{MASKHI}, v{r}', f'v_mul_f32 v{u0}, 0xbfb8aa3b, v{t0}', f'v_mul_f32 v{u1}, 0xbfb8aa3b, v{t1}',
                f'v_exp_f32 v{u0}, v{u0}', f'v_exp_f32 v{u1}, v{u1}', f'v_add_f32 v{u0}, 1.0, v{u0}', f'v_add_f32 v{u1}, 1.0, v{u1}',
                f'v_rcp_f32 v{u0}, v{u0}', f'v_rcp_f32 v{u1}, v{u1}', f'v_mul_f32 v{t0}, v{t0}, v{u0}', f'v_mul_f32 v{t1}, v{t1}, v{u1}', f'v_cvt_pk_bf16_f32 v{r}, v{t0}, v{t1}'])
    a('ds_write_b64 v18, v[240:241]')
    a(f'v_and_b32 v16, 1, v1\nv_mul_u32_u24 v16, 576, v16\nv_lshrrev_b32 v19, 4, v1\nv_lshl_add_u32 v16, v19, 3, v16\nv_add_u32 v16, {L_SILU}, v16')
    strip_tr_base(a, 17, 18, 20, RING)
    a(f'v_xor_b32 v20, s{WAVE}, v20\nv_lshl_add_u32 v17, v20, 5, v17\nv_add_u32 v18, {2*RING}, v17')
    a(f'v_and_b32 v20, 15, v1\nv_mul_u32_u24 v21, 13824, v20\nv_lshl_add_u32 v21, v19, 4, v21\nv_cmp_gt_u32 vcc, 2, v20\nv_mov_b32 v19, 0x7fffffff\nv_cndmask_b32 v19, v19, v21, vcc')
    a(f's_and_b32 s60, s{TT}, 3\ns_mul_i32 s60, s60, 27648\ns_lshl_b32 s62, s62, 8\ns_add_u32 s60, s60, s62\ns_lshl_b32 s33, s{WAVE}, 6\ns_add_u32 s60, s60, s33')
    get_nonce(a)
    a.wvm(mtok); a('s_waitcnt lgkmcnt(0)\ns_barrier'); a.stamp(1)
    for i in range(9):
        a(f'ds_read_b64_tr_b16 {vr(112+4*i,2)}, v17 offset:{(18+i)*1024}\nds_read_b64_tr_b16 {vr(114+4*i,2)}, v18 offset:{(18+i)*1024}')
        a(f'ds_read_b64 {vr(64+4*i,2)}, v16 offset:{64*i}\nds_read_b64 {vr(66+4*i,2)}, v16 offset:{64*i+32}')
        if i >= 2:
            a('s_waitcnt lgkmcnt(8)')
            a(f'v_mfma_f32_16x16x32_bf16 {vr(T,4)}, {vr(112+4*(i-2),4)}, {vr(64+4*(i-2),4)}, {vr(T,4) if i > 2 else 0}')
    a(f's_waitcnt lgkmcnt(0)\ns_barrier')
    for i in (7, 8): a(f'v_mfma_f32_16x16x32_bf16 {vr(T,4)}, {vr(112+4*i,4)}, {vr(64+4*i,4)}, {vr(T,4)}')
    pack4(a, T)
    a(f'buffer_store_dwordx4 {vr(T,4)}, v19, s[{S_WS}:{S_WS+3}], s60 offen sc1')
    a.stamp(2)
    for L in range(XE, 5): xdma(L)
    W1 = a.o('w1', 4)
    for j in range(WE, W1): wdma(j)
    XA = 248
    a('v_and_b32 v16, 31, v1\nv_lshrrev_b32 v17, 5, v1\nv_lshrrev_b32 v18, 3, v16\nv_lshlrev_b32 v18, 10, v18\nv_and_b32 v19, 7, v16\nv_lshl_add_u32 v18, v19, 7, v18')
    a(f'v_add_u32 v18, s{RB}, v18\nv_bfe_u32 v19, v16, 1, 3\nv_xor_b32 v19, v19, v17')
    for jj in range(4): a(f'v_xor_b32 v20, {2*jj}, v19\nv_lshl_add_u32 v{XA+jj}, v20, 4, v18')
    a('v_lshrrev_b32 v18, 4, v16\nv_lshlrev_b32 v18, 10, v18\nv_and_b32 v19, 15, v16\nv_lshl_add_u32 v18, v19, 6, v18')
    a(f'v_add_u32 v18, s{RB}, v18\nv_bfe_u32 v19, v16, 2, 2\nv_xor_b32 v19, v19, v17')
    for jj in range(2): a(f'v_xor_b32 v20, {2*jj}, v19\nv_lshl_add_u32 v{XA+4+jj}, v20, 4, v18')
    a('v_lshrrev_b32 v16, 5, v1\nv_bfe_u32 v17, v1, 2, 2\nv_lshlrev_b32 v18, 11, v16\nv_lshl_add_u32 v18, v17, 8, v18\nv_and_b32 v19, 1, v1\nv_lshl_add_u32 v18, v19, 3, v18')
    a(f'v_add_u32 v18, s{RB}, v18\nv_bfe_u32 v19, v1, 4, 1\nv_lshlrev_b32 v19, 1, v19\nv_bfe_u32 v30, v1, 1, 1\nv_add_u32 v19, v19, v30\nv_lshlrev_b32 v17, 2, v17\nv_xor_b32 v19, v19, v17')
    for cb in range(4):
        a(f's_add_u32 s33, s{WAVE}, {cb+1}\ns_and_b32 s33, s33, 3\ns_lshl_b32 s33, s33, 2\nv_xor_b32 v30, s33, v19\nv_lshl_add_u32 v{24+cb}, v30, 4, v18')
    a(f's_lshr_b32 s33, s77, 3\ns_mul_i32 s71, s33, 13824\ns_lshl_b32 s33, s78, 9\ns_add_u32 s71, s71, s33\ns_lshl_b32 s33, s{WAVE}, 7\ns_add_u32 s71, s71, s33')
    a('v_lshrrev_b32 v16, 4, v1\nv_mul_u32_u24 v16, 27648, v16\nv_bfe_u32 v31, v1, 3, 1\nv_mul_u32_u24 v17, 4608, v31\nv_and_b32 v18, 7, v1\nv_lshl_add_u32 v17, v18, 4, v17\nv_add_u32 v16, v16, v17\nv_cvt_f32_u32 v31, v31')
    a(f's_lshl_b32 s33, s{WAVE}, 10\ns_add_u32 s33, s33, {L_SCALE}\nv_lshlrev_b32 v19, 4, v1\nv_add_u32 v17, s33, v19\nv_lshrrev_b32 v18, 5, v1\nv_lshlrev_b32 v18, 5, v18\nv_add_u32 v18, s33, v18\nv_mov_b32 v28, v19\nv_add_u32 v29, 73728, v19\nv_add_u32 v19, s79, v19')
    a(f's_mul_i32 s70, s77, 72\ns_lshl_b32 s33, s78, 3\ns_add_u32 s70, s70, s33\ns_lshl_b32 s33, s{WAVE}, 1\ns_add_u32 s70, s70, s33\ns_lshl_b32 s64, s70, 6\ns_add_u32 s64, s64, {WS_FLAG+F_H*128}\ns_lshl_b32 s70, s70, 10\ns_add_u32 s70, s70, {WS_H}')
    a('v_mov_b32 v20, 0\nv_mov_b32 v21, 0\nv_mov_b32 v22, 0\nv_mov_b32 v23, 0\ns_mov_b32 s69, 0x3f803f80')
    for L in range(5):
        a.wvm(xtok[L])
        n = 4 if L < 4 else 2
        for i in range(n): a(f'ds_read_b128 {vr(64+16*L+4*i,4)}, v{XA+i+(L>>2)*4} offset:{4096*L}')
        a('s_waitcnt lgkmcnt(0)')
        for i in range(4 * n): a(f'v_dot2_f32_bf16 v{20+(i&1)}, v{64+16*L+i}, s69, v{20+(i&1)}\nv_dot2_f32_bf16 v{22+(i&1)}, v{64+16*L+i}, v{64+16*L+i}, v{22+(i&1)}')
        if L == a.o('pollpos', 2): a(f'buffer_load_dwordx4 v[32:35], v16, s[{S_WS}:{S_WS+3}], s71 offen sc1'); ptok = a.vmtok()
    a.stamp(3)
    a('v_add_f32 v20, v20, v21\nv_add_f32 v22, v22, v23\nv_permlane32_swap_b32 v20, v22\nv_add_f32 v20, v20, v22')
    a(f's_lshl_b32 s33, s{WAVE}, 8\nv_lshlrev_b32 v5, 2, v1\nv_add_u32 v5, s33, v5\nv_and_b32 v4, 31, v1\nv_lshlrev_b32 v4, 2, v4\nv_add_u32 v4, {L_STATS}, v4\nds_write_b32 v5, v20 offset:{L_STATS}\ns_waitcnt lgkmcnt(0)\ns_barrier' if L_STATS < 65536 else
      f's_lshl_b32 s33, s{WAVE}, 8\ns_add_u32 s33, s33, {L_STATS}\nv_lshlrev_b32 v5, 2, v1\nv_add_u32 v5, s33, v5\nv_and_b32 v4, 31, v1\nv_lshlrev_b32 v4, 2, v4\nv_add_u32 v4, {L_STATS}, v4\nds_write_b32 v5, v20\ns_waitcnt lgkmcnt(0)\ns_barrier')
    for w in range(4): a(f'ds_read2_b32 {vr(T+2*w,2)}, v4 offset0:{64*w} offset1:{64*w+32}')
    def w_reads(j):
        o = [lambda: a.wvm(wtok[j])]
        for cb in range(4): o += [f'ds_read_b64_tr_b16 {WF(j,cb,2)}, v{24+cb} offset:{SL(j)}', f'ds_read_b64_tr_b16 {WF(j,cb,2,2)}, v{24+cb} offset:{SL(j)+1024}']
        return o
    for i in range(8): a(f'v_lshlrev_b32 v{40+2*i}, 16, v{XS+i}\nv_and_b32 v{41+2*i}, s{MASKHI}, v{XS+i}')
    a('s_waitcnt lgkmcnt(0)')
    a(f'v_add_f32 v{T}, v{T}, v{T+2}\nv_add_f32 v{T+1}, v{T+1}, v{T+3}\nv_add_f32 v{T+4}, v{T+4}, v{T+6}\nv_add_f32 v{T+5}, v{T+5}, v{T+7}')
    a(f'v_add_f32 v{T}, v{T}, v{T+4}\nv_add_f32 v{T+1}, v{T+1}, v{T+5}')
    inv = '0x3a638e39'
    a(f'v_mul_f32 v{T}, {inv}, v{T}\nv_mul_f32 v{T+1}, {inv}, v{T+1}\nv_fma_f32 v{T+1}, -v{T}, v{T}, v{T+1}\nv_max_f32 v{T+1}, 0, v{T+1}\nv_add_f32 v{T+1}, 0x3727c5ac, v{T+1}')
    a(f'v_rsq_f32 v4, v{T+1}\nv_mul_f32 v5, v{T}, v4\nv_sub_f32 v5, 0, v5')
    for i in range(8): a(f'v_pk_fma_f32 {vr(40+2*i,2)}, {vr(40+2*i,2)}, v[4:5], v[4:5] op_sel:[0,0,1] op_sel_hi:[1,0,1]')
    a.stamp(4)
    Lp = a.lab('mp'); Le = a.lab('me'); Lc = a.lab('mc')
    a(f's_mov_b32 s33, {SPIN}'); a.wvm(ptok); a(f's_branch {Lc}\n{Lp}:')
    a.L.append(f'buffer_load_dwordx4 v[32:35], v16, s[{S_WS}:{S_WS+3}], s71 offen sc1'); a('s_waitcnt vmcnt(0)')
    a(f'{Lc}:\nv_cmp_ne_u32 vcc, s{NONCE}, v35\ns_sub_u32 s33, s33, 1\ns_cmp_eq_u32 s33, 0\ns_cbranch_scc1 {Le}\ns_nop 1\ns_cbranch_vccnz {Lp}\n{Le}:')
    a.stamp(5)
    a.emit(unpack4(32, T))
    a('v_permlane32_swap_b32 v32, v33\nv_permlane32_swap_b32 v34, v35\nv_add_f32 v32, v32, v33\nv_add_f32 v34, v34, v35\nv_permlane16_swap_b32 v32, v34\nv_add_f32 v32, v32, v34')
    a(f'v_cvt_pk_bf16_f32 v32, v32, v32\nv_and_b32 v32, s{MASKHI}, v32\nv_add_f32 v32, v31, v32\nv_cvt_pk_bf16_f32 v32, v32, v32\nv_and_b32 v32, s{MASKHI}, v32')
    a(f'v_and_b32 v6, 15, v1\nv_lshlrev_b32 v6, 4, v6\nv_bfe_u32 v7, v1, 4, 1\nv_lshl_add_u32 v6, v7, 3, v6\nv_lshrrev_b32 v7, 5, v1\nv_lshl_add_u32 v6, v7, 2, v6\ns_lshl_b32 s33, s{WAVE}, 10\ns_add_u32 s33, s33, {L_SCALE}\nv_add_u32 v6, s33, v6')
    a('ds_write_b32 v6, v32')
    for u in range(2):
        for q in range(4): a(f'ds_read_b128 {vr(216+16*u+4*q,4)}, v18 offset:{64*u+16*(q&1)+128*(q>>1)}')
    for u in range(2):
        a(f's_waitcnt lgkmcnt({4-4*u})')
        for i in range(4): a(f'v_pk_fma_f32 {vr(40+8*u+2*i,2)}, {vr(40+8*u+2*i,2)}, {vr(216+16*u+8+2*i,2)}, {vr(216+16*u+2*i,2)}')
        for i in range(4): a(f'v_cvt_pk_bf16_f32 v{XS+4*u+i}, v{40+8*u+2*i}, v{41+8*u+2*i}')
        a(f'buffer_store_dwordx4 {vr(XS+4*u,4)}, v19, s[{S_WS}:{S_WS+3}], s70 offen offset:{1024*u} sc1')
    htok = a.vmtok()
    a.stamp(10)
    NF = a.o('nf', 2)
    def w2(j): a.emit(w_reads(j)); a('s_waitcnt lgkmcnt(0)'); wdma(j + 9)
    a(f'v_cmp_eq_u32 vcc, 0, v1\nv_mov_b32 v6, 0x7fffffff\nv_mov_b32 v7, s79\nv_cndmask_b32 v6, v6, v7, vcc\nv_mov_b32 v7, s{NONCE}')
    for j in range(W1, W1 + NF): wdma(j)
    a.wvm(htok)
    a(f'buffer_store_dword v7, v6, s[{S_WS}:{S_WS+3}], s64 offen sc1')
    a.stamp(12)
    a(f's_mul_i32 s33, s{RT}, 72\ns_mul_i32 s32, s{WAVE}, 9\ns_add_u32 s33, s33, s32\ns_add_u32 s33, s33, {F_H+WS_FLAG//128}\nv_min_u32 v8, 17, v1\nv_and_b32 v9, 1, v8\nv_mul_u32_u24 v9, 36, v9\nv_lshrrev_b32 v8, 1, v8\nv_add3_u32 v8, v8, v9, s33\nv_lshlrev_b32 v8, 7, v8')
    a(f's_mul_i32 s98, s{RT}, {144*1024}\ns_mul_i32 s33, s{WAVE}, {18*1024}\ns_add_u32 s98, s98, s33\ns_add_u32 s98, s98, {WS_H}\ns_lshl_b32 s97, s99, 10\ns_add_u32 s97, s97, s98\ns_add_u32 s98, s98, {18*1024}')
    a.pre3()
    for j in range(W1 + NF, 9): wdma(j)
    for j in range(9): w2(j)
    a.stamp(9)
    a.poll_flags(8, 9)
    a.stamp(11)
    htk = {}
    def hld(j, tbs=(0, 1)):
        for tb in tbs: a(f'buffer_load_dwordx4 {vr(X(j,tb),4)}, v{28+tb}, s[{S_WS}:{S_WS+3}], s97 offen sc1')
        if 1 in tbs: a(f's_add_u32 s97, s97, 1024\ns_cmp_ge_u32 s97, s98\ns_cselect_b32 s33, {18*1024}, 0\ns_sub_u32 s97, s97, s33')
        htk[j] = a.vmtok()
    DH = a.o('dh', 6)
    for j in range(DH): hld(j)
    for j in range(18):
        a.wvm(htk[j])
        if j in (9, 10): a('s_waitcnt lgkmcnt(0)')
        mf = [f'v_mfma_f32_32x32x16_bf16 {ACC(cb,tb)}, {WF(j,cb)}, {vr(X(j,tb),4)}, {ACC(cb,tb) if j else 0}' for cb in range(4) for tb in range(2)]
        fills = [[] for _ in range(8)]
        if 1 <= j <= 9:
            for i, it in enumerate(w_reads(j + 8)[1:]): fills[i // 2].append(it)
        if j + DH < 18:
            for tb in range(2): fills[a.o('dpos', (4, 6))[tb]].append(lambda j=j, tb=tb: hld(j + DH, (tb,)))
        if 0 <= j - a.o('wo0', 13) < 3: fills[1].append(lambda j=j: a.wo(j - a.o('wo0', 13)))
        for i in range(8):
            a(mf[i]); a.emit(fills[i])
    a.stamp(6)
    a(f'v_lshlrev_b32 v10, 4, v1\nv_add_u32 v11, s{RB}, v10')
    for cb in range(3):
        for tb in range(2):
            for q in range(4): a(f'ds_write_b128 v11, {ar((cb*2+tb)*16+4*q,4)} offset:{cb*8192+tb*4096+q*1024}')
    for cb in range(3):
        a(f's_add_u32 s33, s{WAVE}, {3-cb}\ns_and_b32 s33, s33, 3\ns_mul_i32 s33, s33, {RING}\nv_add_u32 v{12+cb}, s33, v10')
    a('v_bfe_u32 v16, v1, 4, 1\nv_mul_u32_u24 v16, 36864, v16\nv_and_b32 v17, 15, v1\nv_lshl_add_u32 v16, v17, 4, v16\nv_lshrrev_b32 v17, 5, v1\nv_lshl_add_u32 v16, v17, 8, v16')
    a(f's_mul_i32 s33, s{CT}, 57\ns_lshr_b32 s33, s33, 9\ns_mul_i32 s70, s33, 9\ns_sub_u32 s70, s{CT}, s70\ns_lshl_b32 s70, s70, 2\ns_add_u32 s70, s70, s{WAVE}')
    a(f's_mul_i32 s71, s{RT}, 144\ns_add_u32 s70, s70, s71\ns_lshl_b32 s70, s70, 10\ns_mul_i32 s33, s33, 0x120000\ns_add_u32 s70, s70, s33\ns_add_u32 s70, s70, {WS_QKV}\ns_add_u32 s71, s70, 73728')
    a('s_waitcnt lgkmcnt(0)\ns_barrier')
    for tb in range(2):
        toks = []
        for cb in range(3):
            for q in range(4): a(f'ds_read_b128 {vr(64+tb*48+cb*16+4*q,4)}, v{12+cb} offset:{cb*8192+tb*4096+q*1024}')
            toks.append(a.lgtok())
        if tb == 0: t0 = toks
        else: t1 = toks
        if tb == 0:
            for cb in range(3):
                a.wlg(t0[cb])
                for i in range(0, 16, 2): a(f'v_pk_add_f32 {vr(OWN+i,2)}, {vr(OWN+i,2)}, {vr(64+cb*16+i,2)}')
    def pack(tb):
        R = OWN + 16 * tb; P = 160 + 8 * tb
        for hh in range(2):
            for i, rr in enumerate((4 * hh, 4 * hh + 2, 8 + 4 * hh, 10 + 4 * hh)): a(f'v_cvt_pk_bf16_f32 v{P+4*hh+i}, v{R+rr}, v{R+rr+1}')
            a(f'buffer_store_dwordx4 {vr(P+4*hh,4)}, v16, s[{S_WS}:{S_WS+3}], s{70+tb} offen offset:{512*hh} sc1')
    pack(0)
    for cb in range(3):
        a.wlg(t1[cb])
        for i in range(0, 16, 2): a(f'v_pk_add_f32 {vr(OWN+16+i,2)}, {vr(OWN+16+i,2)}, {vr(112+cb*16+i,2)}')
    pack(1)
    a.stamp(7)
    a.set_flag(TT, 10)
    a.stamp(8)
    if a.prof and a.o('pa', 0): a('s_memtime s[34:35]\ns_waitcnt lgkmcnt(0)\ns_sub_u32 s94, s34, s94')

def build(prof=False, opt=None, phases=None):
    a = G(prof, opt)
    a.pre3 = lambda: phases['pre3'](a)
    a.wo = lambda q: phases['wo'](a, q)
    prologue(a)
    a(f's_cmp_lt_u32 s{XCD}, 3\ns_cselect_b32 s33, 32, 24\ns_cmp_ge_u32 s{JJ}, s33\ns_cbranch_scc1 L_side')
    phaseA(a)
    if a.o('xa', 0): a('s_branch L_fin')
    if phases: phases['main'](a)
    a('s_branch L_fin\nL_side:')
    a.vm = a.gtok; a.lg = 0
    if a.o('xs', 0): a('s_branch L_fin')
    if phases: phases['side'](a)
    a('L_fin:'); a.flush_prof(); a('L_end:\ns_endpgm')
    hdr = open('standalone__pixart__diffusion.s.ref').read().split('; Override launch')[0]
    hdr += f'; @launch grid=(256,1,1) block=(256,1,1) lds=163840\n.amdgcn_target "amdgcn-amd-amdhsa--gfx950"\n.text\n.globl {NAME}\n.p2align 8\n.type {NAME},@function\n{NAME}:\n'
    kd = f'''.section .rodata,"a"
.p2align 6
.amdhsa_kernel {NAME}
  .amdhsa_next_free_vgpr 512
  .amdhsa_next_free_sgpr 102
  .amdhsa_accum_offset 256
  .amdhsa_group_segment_fixed_size 0
  .amdhsa_kernarg_size 96
  .amdhsa_user_sgpr_count 2
  .amdhsa_user_sgpr_kernarg_segment_ptr 1
  .amdhsa_system_sgpr_workgroup_id_x 1
  .amdhsa_float_denorm_mode_32 3
.end_amdhsa_kernel
'''
    return hdr + a.text() + kd
if __name__ == '__main__':
    open('t.s', 'w').write(build(prof=True))
```

```python
import sys; sys.path.insert(0, 'work')
from gen import *
import gen
SS = 77
LOG2E = '0x3fb8aa3b'
WSR = f's[{S_WS}:{S_WS+3}]'
def mf32(d, A, B, c): return f'v_mfma_f32_16x16x32_bf16 {d}, {A}, {B}, {c}'
def mf16(d, A, B, c): return f'v_mfma_f32_16x16x16_bf16 {d}, {A}, {B}, {c}'
def flag2(a, sidx, vt, cnt=0):
    a(f's_waitcnt vmcnt({cnt})\ns_barrier')
    a(f's_lshl_b32 s32, s{sidx}, 7\ns_add_u32 s32, s32, {WS_FLAG}')
    a(f'v_cmp_eq_u32 vcc, 0, v0\nv_mov_b32 v{vt}, 0x7fffffff\nv_cndmask_b32 v{vt}, v{vt}, 0, vcc\nv_mov_b32 v{vt+1}, s{NONCE}')
    a(f'buffer_store_dword v{vt+1}, v{vt}, {WSR}, s32 offen sc1')
def rtile_dma_addr(a, d, t0, t1):
    a(f'v_lshrrev_b32 v{t0}, 3, v1\nv_mul_u32_u24 v{t0}, 2304, v{t0}\nv_lshrrev_b32 v{t1}, 4, v1\nv_and_b32 v{d+2}, 7, v1\nv_xor_b32 v{d}, v{d+2}, v{t1}\nv_xor_b32 v{d+1}, 4, v{d}')
    a(f'v_lshl_add_u32 v{d}, v{d}, 4, v{t0}\nv_lshl_add_u32 v{d+1}, v{d+1}, 4, v{t0}\nv_add_u32 v{d+1}, {8*2304-1024}, v{d+1}')
    a(f'v_add_u32 v{d+2}, {2*(8*2304-1024)}, v{d}\nv_add_u32 v{d+3}, {2*(8*2304-1024)}, v{d+1}')
def tr_addrs(a, d, sx, t0, t1, t2):
    strip_tr_base(a, t2, t0, t1)
    a(f'v_add_u32 v{t2}, s{RB}, v{t2}\nv_xor_b32 v{t1}, s{sx}, v{t1}')
    for c in range(4): a(f'v_xor_b32 v{t0}, {c}, v{t1}\nv_lshl_add_u32 v{d+c}, v{t0}, 5, v{t2}')
def rt_base(a, d, f, t):
    a(f'v_bfe_u32 v{t}, v1, 3, 1\nv_lshlrev_b32 v{d}, 10, v{t}\nv_and_b32 v{t}, 7, v1\nv_lshl_add_u32 v{d}, v{t}, 7, v{d}\nv_bfe_u32 v{t}, v1, 4, 1\nv_lshl_add_u32 v{d}, v{t}, 3, v{d}')
    a(f'v_bfe_u32 v{f}, v1, 1, 3\nv_lshrrev_b32 v{t}, 5, v1\nv_xor_b32 v{f}, v{f}, v{t}')
def reduce4(a, M, own, oth, tmp, v10=10):
    a(f'v_lshlrev_b32 v{v10}, 4, v1\nv_add_u32 v{v10+1}, s{RB}, v{v10}')
    for sg in (1, 2, 3):
        for m in range(M): a(f'ds_write_b128 v{v10+1}, {ar(oth(sg,m),4)} offset:{((sg-1)*M+m)*1024}')
    for sg in (1, 2, 3): a(f's_xor_b32 s33, s{WAVE}, {sg}\ns_mul_i32 s33, s33, {RING}\nv_add_u32 v{v10+1+sg}, s33, v{v10}')
    a('s_waitcnt lgkmcnt(0)\ns_barrier')
    toks = []
    for sg in (1, 2, 3):
        for m in range(M): a(f'ds_read_b128 {vr(tmp+((sg-1)*M+m)*4,4)}, v{v10+1+sg} offset:{((sg-1)*M+m)*1024}')
        toks.append(a.lgtok())
    for sg in (1, 2, 3):
        a.wlg(toks[sg-1])
        for i in range(4 * M): a(f'v_add_f32 v{own+i}, v{own+i}, v{tmp+(sg-1)*M*4+i}')
def l16(a, d):
    a(f'v_lshlrev_b32 v{d}, 4, v1\nv_add_u32 v{d+1}, 4096, v{d}\nv_add_u32 v{d+2}, 8192, v{d}')
def fload(a, dst, i, va, so): a(f'buffer_load_dwordx4 {dst}, v{va+(i>>2)}, {WSR}, s{so} offen offset:{(i&3)*1024} sc1')

OWN = 32
def ACC5(b, kb, e):
    sg = b + 2 * (e >> 1); m = kb * 2 + (e & 1)
    return vr(OWN + 4 * m, 4) if sg == 0 else ar((sg - 1) * 40 + 4 * m, 4)
def side(a):
    a(f's_lshl_b32 s{SS}, s{XCD}, 3\ns_add_u32 s{SS}, s{SS}, s{JJ}\ns_sub_u32 s{SS}, s{SS}, 48\ns_cmp_ge_u32 s{SS}, 36\ns_cbranch_scc1 L_help')
    a.srd(S_A, P_Y, 2 * 177408); a.srd(S_B, P_WKV, 1152 * 4608)
    strip_dma_addr(a, 4, 4608, 16, 17)
    rtile_dma_addr(a, 8, 16, 17)
    a('v_lshrrev_b32 v16, 3, v1\nv_min_u32 v17, 4, v16\nv_sub_u32 v16, v16, v17\nv_mul_u32_u24 v16, 2304, v16\nv_sub_u32 v12, v9, v16')
    a(f's_mul_i32 s60, s{WAVE}, 5\ns_lshl_b32 s33, s{WAVE}, 2\ns_add_u32 s33, s33, 2\ns_cmp_lt_u32 s{WAVE}, 2\ns_cselect_b32 s60, s60, s33\ns_cselect_b32 s61, 5, 4')
    a(f's_and_b32 s33, s{WAVE}, 1\ns_mul_i32 s62, s33, 177408\ns_sub_u32 s63, 177408, s62\ns_lshl_b32 s64, s{SS}, 7\ns_and_b32 s65, s{WAVE}, 2\ns_mov_b32 s66, s{RB}')
    def wd(dc):
        a(f's_add_u32 s67, s60, {dc}\ns_min_u32 s67, s67, 17\ns_mul_i32 s67, s67, {64*4608}\ns_add_u32 s67, s67, s64')
        for h in range(2): a.dma4(4, 4, S_B, 67, h * 32 * 4608, h * 4096, flags=a.o('snt', 'nt'), ldsbase=66)
    def yd(dc, b):
        a(f's_add_u32 s67, s60, {dc}\ns_min_u32 s67, s67, 17\ns_lshl_b32 s67, s67, 7\ns_add_u32 s67, s67, s{62+b}')
        L = 16384 + 10240 * b
        a.dma4(8, 4, S_A, 67, 0, L, flags=''); a.dma4(8, 4, S_A, 67, 32 * 2304, L + 4096, flags='')
        a.dma4(8, 1, S_A, 67, 64 * 2304, L + 8192, flags=''); a(f'buffer_load_dwordx4 v12, s[{S_A}:{S_A+3}], s32 offen offset:1024 lds')
    wd(0); yd(0, 0); yd(0, 1); a('s_xor_b32 s66, s66, 8192') if False else a(f's_add_u32 s66, s{RB}, 8192'); wd(1); a(f's_mov_b32 s66, s{RB}\ns_mov_b32 s68, 8192')
    tr_addrs(a, 20, 65, 16, 17, 18)
    rt_base(a, 18, 17, 16)
    a(f'v_add_u32 v18, s{RB}, v18')
    for q in range(4): a(f'v_xor_b32 v16, {2*q}, v17\nv_lshl_add_u32 v{24+q}, v16, 4, v18')
    for i in range(40): a(f'v_mov_b32 v{OWN+i}, 0')
    for i in range(120): a(f'v_accvgpr_write_b32 a{i}, 0')
    sels(a)
    a('s_waitcnt vmcnt(36)')
    a(f'v_readfirstlane_b32 s{NONCE}, v3\ns_mul_i32 s{NONCE}, s{NONCE}, 0x9E3779B1\ns_add_u32 s{NONCE}, s{NONCE}, 0x7F4A7C15')
    WF = lambda h, e: 104 + (h * 4 + e) * 4
    YF = lambda h, kb: 136 + (h * 5 + kb) * 4
    a('L_kvc:')
    for b in range(2):
        a('s_waitcnt vmcnt(18)')
        if b == 0:
            for h in range(2):
                for e in range(4): a(f'ds_read_b64_tr_b16 {vr(WF(h,e),2)}, v{20+e} offset:{h*4096}\nds_read_b64_tr_b16 {vr(WF(h,e)+2,2)}, v{20+e} offset:{h*4096+2048}')
        for h in range(2):
            for kb in range(5):
                for j2 in range(2): a(f'ds_read_b64 {vr(YF(h,kb)+2*j2,2)}, v{24+2*h+j2} offset:{16384+10240*b+2048*kb}')
        a('s_waitcnt lgkmcnt(0)')
        yd(1, b)
        if b == 1:
            wd(2); a('s_add_u32 s66, s66, s68')
            for e in range(4): a(f'v_add_u32 v{20+e}, s68, v{20+e}')
            a('s_sub_u32 s68, 0, s68\ns_add_u32 s60, s60, 1\ns_sub_u32 s61, s61, 1')
        for h in range(2):
            for kb in range(5):
                for e in range(4): a(mf32(ACC5(b,kb,e), vr(WF(h,e),4), vr(YF(h,kb),4), ACC5(b,kb,e)))
    a('s_cmp_lg_u32 s61, 0\ns_cbranch_scc1 L_kvc\ns_nop 7\ns_waitcnt vmcnt(0)')
    a.stamp(1)
    reduce4(a, 10, OWN, lambda sg, m: (sg - 1) * 40 + 4 * m, 104)
    a(f's_cmp_ge_u32 s{SS}, 18\ns_cselect_b32 s69, 18, 0\ns_cselect_b32 s70, 0x5A000, 0\ns_sub_u32 s69, s{SS}, s69')
    a(f's_and_b32 s33, s{WAVE}, 1\ns_mul_i32 s71, s33, 180\ns_lshl_b32 s33, s69, 1\ns_add_u32 s71, s71, s33\ns_lshr_b32 s33, s{WAVE}, 1\ns_add_u32 s71, s71, s33\ns_lshl_b32 s71, s71, 10\ns_add_u32 s71, s71, s70\ns_add_u32 s71, s71, {WS_KVC}')
    for kb in range(5):
        R = OWN + 8 * kb; P = 232 + 4 * (kb & 1)
        for i in range(4): a(f'v_cvt_pk_bf16_f32 v{P+i}, v{R+2*i}, v{R+2*i+1}')
        a(f'buffer_store_dwordx4 {vr(P,4)}, v10, {WSR}, s71 offen sc1\ns_add_u32 s71, s71, 36864')
    a('s_barrier')
    a.stamp(2)
    WQ = lambda i, e: (ar(120 + 4 * (i * 4 + e), 4) if i * 4 + e < 34 else vr(232 + 4 * (i * 4 + e - 34), 4))
    WQ2 = lambda i, e, h: (ar(120 + 4 * (i * 4 + e) + 2 * h, 2) if i * 4 + e < 34 else vr(232 + 4 * (i * 4 + e - 34) + 2 * h, 2))
    FR = lambda i, b, kb: vr(72 + ((i & 3) * 10 + b * 5 + kb) * 4, 4)
    def common():
        a(f's_add_u32 s78, s{SS}, {F_KVC}')
        flag2(a, 78, 16, 36)
        l16(a, 28)
        a(f's_and_b32 s33, s{WAVE}, 1\ns_mul_i32 s60, s33, 184320\ns_sub_u32 s65, 184320, s60\ns_mul_i32 s33, s{WAVE}, 9216\ns_add_u32 s33, s33, s70\ns_add_u32 s33, s33, {WS_KVC}\ns_add_u32 s60, s60, s33\ns_add_u32 s65, s65, s33')
        for kb in range(1, 5): a(f's_add_u32 s{60+kb}, s60, {kb*36864}\ns_add_u32 s{65+kb}, s65, {kb*36864}')
        a(f's_cmp_eq_u32 s70, 0\ns_cselect_b32 s33, 0, 18\ns_add_u32 s33, s33, {F_KVC}\nv_min_u32 v16, 17, v1\nv_add_u32 v16, s33, v16\nv_lshlrev_b32 v16, 7, v16\nv_add_u32 v16, {WS_FLAG}, v16')
    def mm(kq):
        a.stamp(3)
        a.poll_flags(16, 17)
        a.stamp(4)
        tok = {}
        def ld(i):
            for b in range(2):
                for kb in range(5): fload(a, FR(i,b,kb), i, 28, 60 + 5 * b + kb)
            tok[i] = a.vmtok()
        for i in range(4): ld(i)
        for i in range(9):
            a.wvm(tok[i])
            for b in range(2):
                for kb in range(5):
                    for e in range(4):
                        A, B = (WQ(i,e), FR(i,b,kb)) if kq else (FR(i,b,kb), WQ(i,e))
                        a(mf32(ACC5(b,kb,e), A, B, ACC5(b,kb,e) if i else 0))
            if i + 4 < 9: ld(i + 4)
    a(f's_cmp_lg_u32 s70, 0\ns_cbranch_scc1 L_vo')
    a.srd(S_A, P_WQC, 1152 * 2304)
    rtile_dma_addr(a, 4, 16, 17)
    a(f's_mul_i32 s60, s{WAVE}, 9\ns_mul_i32 s61, s69, {64*2304}')
    for q in range(9):
        a(f's_add_u32 s62, s60, {q}\ns_and_b32 s63, s62, 1\ns_mul_i32 s63, s63, {32*2304}\ns_lshr_b32 s62, s62, 1\ns_lshl_b32 s62, s62, 7\ns_add_u32 s62, s62, s63\ns_add_u32 s62, s62, s61')
        a.dma4(4, 4, S_A, 62, 0, q * 4096, flags=a.o('snt', 'nt'))
    common()
    rt_base(a, 18, 17, 19)
    for p in range(2):
        a(f's_mul_i32 s33, s{WAVE}, 9\ns_add_u32 s33, s33, {p}\ns_and_b32 s78, s33, 1\ns_lshl_b32 s78, s78, 2\ns_lshr_b32 s33, s33, 1\ns_lshl_b32 s33, s33, 13\ns_and_b32 s79, s{WAVE}, 2\ns_lshl_b32 s79, s79, 11\ns_add_u32 s33, s33, s79')
        for j2 in range(2):
            r = 20 + 4 * p + 2 * j2
            a(f'v_xor_b32 v19, s78, v17\nv_xor_b32 v19, {2*j2}, v19\nv_lshl_add_u32 v{r}, v19, 4, v18\nv_add_u32 v{r}, s33, v{r}\nv_xor_b32 v{r+1}, 4096, v{r}')
    a('s_waitcnt vmcnt(0)\ns_barrier')
    for i in range(9):
        for e in range(4):
            for j2 in range(2): a(f'ds_read_b64 {WQ2(i,e,j2)}, v{20+4*(i&1)+2*j2+(e>>1)} offset:{(i>>1)*8192+(e&1)*2048}')
        if i % 2 == 1: a('s_waitcnt lgkmcnt(0)')
    a('s_waitcnt lgkmcnt(0)\ns_barrier')
    mm(True)
    a('s_branch L_kq2\nL_vo:')
    a.srd(S_A, P_WOC, 1152 * 2304)
    strip_dma_addr(a, 4, 2304, 16, 17)
    a(f's_mul_i32 s60, s{WAVE}, {288*2304}\ns_lshl_b32 s61, s69, 7\ns_add_u32 s60, s60, s61')
    for q in range(9): a.dma4(4, 4, S_A, 60, q * 32 * 2304, q * 4096, flags=a.o('snt', 'nt'))
    common()
    a(f's_and_b32 s78, s{WAVE}, 2')
    tr_addrs(a, 20, 78, 17, 18, 19)
    a('s_waitcnt vmcnt(0)')
    for i in range(9):
        for e in range(4):
            for j2 in range(2): a(f'ds_read_b64_tr_b16 {WQ2(i,e,j2)}, v{20+e} offset:{i*4096+j2*2048}')
        if i % 2 == 1: a('s_waitcnt lgkmcnt(0)')
    a('s_waitcnt lgkmcnt(0)')
    mm(False)
    a('L_kq2:\ns_nop 7')
    a.stamp(5)
    reduce4(a, 10, OWN, lambda sg, m: (sg - 1) * 40 + 4 * m, 72)
    a(f's_cmp_ge_u32 s{SS}, 18\ns_cselect_b32 s69, 18, 0\ns_sub_u32 s69, s{SS}, s69')
    a(f's_and_b32 s33, s{WAVE}, 1\ns_mul_i32 s71, s33, 72\ns_lshl_b32 s33, s69, 2\ns_add_u32 s71, s71, s33\ns_and_b32 s33, s{WAVE}, 2\ns_add_u32 s71, s71, s33\ns_mul_i32 s71, s71, 2560\ns_add_u32 s71, s71, s70\ns_add_u32 s71, s71, {WS_KQ}')
    a('v_lshlrev_b32 v11, 3, v1')
    for e in range(2):
        P = 200 + 12 * e
        for kb in range(5):
            R = OWN + 8 * kb + 4 * e
            for i in range(2): a(f'v_cvt_pk_bf16_f32 v{P+2*kb+i}, v{R+2*i}, v{R+2*i+1}')
        a(f'buffer_store_dwordx4 {vr(P,4)}, v10, {WSR}, s71 offen sc1\nbuffer_store_dwordx4 {vr(P+4,4)}, v10, {WSR}, s71 offen offset:1024 sc1\nbuffer_store_dwordx2 {vr(P+8,2)}, v11, {WSR}, s71 offen offset:2048 sc1\ns_add_u32 s71, s71, 2560')
    a(f's_add_u32 s78, s{SS}, {F_KQVO}')
    flag2(a, 78, 16)
    a.stamp(6)
    a('s_branch L_fin\nL_help:')
    a.vm = a.gtok
    a(f's_cmp_lg_u32 s{SS}, 36\ns_cbranch_scc1 L_fin')
    get_nonce(a)
    a(f'v_mov_b32 v16, {WS_FLAG+128*F_VWO}'); a.poll_flags(16, 17)
    a(f'v_lshlrev_b32 v16, 7, v0\nv_add_u32 v16, {WS_FLAG}, v16'); a.poll_flags(16, 17)
    a(f'v_add_u32 v16, 256, v0\nv_min_u32 v16, 495, v16\nv_lshlrev_b32 v16, 7, v16\nv_add_u32 v16, {WS_FLAG}, v16'); a.poll_flags(16, 17)
    a(f's_mov_b32 s78, {(WS_GEN-WS_FLAG)//128}')
    flag2(a, 78, 16)


def pre3(a):
    a(f's_lshr_b32 s60, s{XCD}, 1\ns_lshl_b32 s60, s60, 1\ns_and_b32 s33, s{JJ}, 1\ns_add_u32 s60, s60, s33\ns_and_b32 s61, s{XCD}, 1\ns_mul_i32 s61, s61, 9\ns_lshr_b32 s63, s{JJ}, 1\ns_min_u32 s63, s63, 8\ns_add_u32 s61, s61, s63')
    if not a.o('rot9', 1): a('s_mov_b32 s63, 0')
    a.srd(S_A, P_WO, 1152 * 2304)
    strip_dma_addr(a, 20, 2304, 30, 31)
    a(f's_mul_i32 s62, s{WAVE}, {288*2304}\ns_lshl_b32 s33, s61, 7\ns_add_u32 s62, s62, s33')
def rot9(a, q, d): a(f's_add_u32 s{d}, s63, {q}\ns_cmp_ge_u32 s{d}, 9\ns_cselect_b32 s33, 9, 0\ns_sub_u32 s{d}, s{d}, s33')
def wo(a, q, guard=False):
    L = a.lab('wo')
    if guard: a(f's_cmp_ge_u32 s{JJ}, 18\ns_cbranch_scc1 {L}')
    rot9(a, q, 64); a(f's_mul_i32 s64, s64, {32*2304}\ns_add_u32 s64, s64, s62')
    a.dma4(20, 4, S_A, 64, 0, ((6 + q) % 9) * 4096, flags=a.o('ont', ''))
    if guard: a(f'{L}:')
def main(a):
    a.late = True
    a(f's_cmp_ge_u32 s{JJ}, 26\ns_cbranch_scc1 L_idle\ns_cmp_ge_u32 s{JJ}, 18\ns_cbranch_scc1 L_s3s')
    WF = lambda i, c: 96 + 16 * i + 4 * c
    VF = lambda i, kb: vr(64 + (i * 4 + kb) * 4, 4)
    AC = lambda kb, c: (vr(OWN + 4 * kb, 4) if c == 0 else ar((c - 1) * 16 + 4 * kb, 4))
    for q in range(3, 9): wo(a, q, False)
    tr_addrs(a, 20, WAVE, 17, 18, 19)
    a('v_lshlrev_b32 v28, 4, v1')
    for i in range(9): rot9(a, i, 64); a(f's_lshl_b32 s64, s64, 10\nv_add_u32 v{240+i}, s64, v28')
    a(f's_mul_i32 s64, s60, {4*36864}\ns_mul_i32 s33, s{WAVE}, 9216\ns_add_u32 s64, s64, s33\ns_add_u32 s64, s64, {WS_QKV+2*0x120000}')
    for kb in range(1, 4): a(f's_add_u32 s{64+kb}, s64, {kb*36864}')
    a(f'v_min_u32 v16, 8, v1\nv_lshlrev_b32 v16, 3, v16\nv_add_u32 v16, s60, v16\nv_lshlrev_b32 v16, 7, v16\nv_add_u32 v16, {WS_FLAG+144*128}, v16')
    for i in range(9):
        if i >= 3: a(f's_waitcnt vmcnt({32-4*i})')
        for c in range(4):
            for j2 in range(2): a(f'ds_read_b64_tr_b16 {ar(WF(i,c)+2*j2,2)}, v{20+c} offset:{(6+i)%9*4096+j2*2048}')
    a.stamp(9)
    a.poll_flags(16, 17)
    a.stamp(10)
    tok = {}
    for i in range(9):
        for kb in range(4): fload(a, VF(i,kb), 0, 240 + i, 64 + kb)
        tok[i] = a.vmtok()
    a(f's_lshr_b32 s33, s60, 2\ns_mul_i32 s70, s33, 72\ns_lshl_b32 s33, s61, 2\ns_add_u32 s70, s70, s33\ns_add_u32 s70, s70, s{WAVE}\ns_lshl_b32 s70, s70, 3\ns_and_b32 s33, s60, 3\ns_lshl_b32 s33, s33, 1\ns_add_u32 s70, s70, s33\ns_lshl_b32 s70, s70, 10\ns_add_u32 s70, s70, {WS_VWO}')
    a(f's_mul_i32 s71, s60, 18\ns_add_u32 s71, s71, s61\ns_add_u32 s71, s71, {F_VWO}\ns_waitcnt lgkmcnt(0)')
    for i in range(9):
        a.wvm(tok[i])
        for kb in range(4):
            for c in range(4): a(mf32(AC(kb,c), VF(i,kb), ar(WF(i,c),4), AC(kb,c) if i else 0))
    reduce4(a, 4, OWN, lambda sg, m: (sg - 1) * 16 + 4 * m, 64)
    for m in range(2):
        for i in range(4): a(f'v_cvt_pk_bf16_f32 v{120+4*m+i}, v{OWN+8*m+2*i}, v{OWN+8*m+2*i+1}')
        a(f'buffer_store_dwordx4 {vr(120+4*m,4)}, v10, {WSR}, s70 offen offset:{1024*m} sc1')
    a('s_branch L_s3e\nL_s3s:')
    a(f's_sub_u32 s33, s{JJ}, 18\ns_and_b32 s60, s33, 1\ns_lshr_b32 s61, s33, 1\ns_and_b32 s33, s{XCD}, 6\ns_add_u32 s60, s60, s33\ns_and_b32 s33, s{XCD}, 1\ns_lshl_b32 s33, s33, 2\ns_add_u32 s61, s61, s33')
    a(f's_and_b32 s33, s{XCD}, 4\ns_lshr_b32 s62, s61, 1\ns_add_u32 s62, s62, s33')
    l16(a, 28)
    a(f's_mul_i32 s63, s{WAVE}, 9216\ns_add_u32 s63, s63, {WS_QKV}')
    for c in range(4): a(f's_xor_b32 s33, s{WAVE}, {c}\ns_lshl_b32 s32, s60, 2\ns_add_u32 s33, s33, s32\ns_mul_i32 s33, s33, 36864\ns_add_u32 s{64+c}, s33, s63')
    a(f's_and_b32 s33, s{XCD}, 4\ns_lshl_b32 s33, s33, 1\ns_add_u32 s33, s33, s61\ns_mul_i32 s33, s33, {2*36864}\ns_add_u32 s68, s33, s63\ns_add_u32 s68, s68, 0x120000\ns_add_u32 s69, s68, 36864')
    a(f'v_min_u32 v16, 17, v1\nv_cmp_gt_u32 vcc, 9, v16\nv_mov_b32 v17, s62\nv_mov_b32 v18, s60\nv_cndmask_b32 v17, v17, v18, vcc\nv_lshl_add_u32 v16, v16, 3, v17\nv_lshlrev_b32 v16, 7, v16\nv_add_u32 v16, {WS_FLAG}, v16')
    a(f's_lshl_b32 s70, s60, 2\ns_add_u32 s70, s70, s{WAVE}\ns_lshl_b32 s70, s70, 3\ns_add_u32 s70, s70, s61\ns_lshl_b32 s70, s70, 10\ns_add_u32 s70, s70, {WS_S}')
    a(f's_lshl_b32 s71, s60, 3\ns_add_u32 s71, s71, s61\ns_add_u32 s71, s71, {F_S}\ns_mov_b32 s78, 0x3cf15bef')
    a.stamp(9)
    a.poll_flags(16, 17)
    a.stamp(10)
    KF = lambda i, m: ar(96 + (i * 2 + m) * 4, 4)
    AS = lambda m, c: (vr(OWN + 4 * m, 4) if c == 0 else ar((c - 1) * 8 + 4 * m, 4))
    for i in range(9):
        for m in range(2): fload(a, KF(i,m), i, 28, 68 + m)
        for c in range(4): fload(a, VF(i,c), i, 28, 64 + c)
        tok[i] = a.vmtok()
    for i in range(9):
        a.wvm(tok[i])
        for m in range(2):
            for c in range(4): a(mf32(AS(m,c), KF(i,m), VF(i,c), AS(m,c) if i else 0))
    reduce4(a, 2, OWN, lambda sg, m: (sg - 1) * 8 + 4 * m, 64)
    for i in range(4): a(f'v_cvt_pk_bf16_f32 v{120+i}, v{OWN+2*i}, v{OWN+2*i+1}')
    for i in range(4): a(f'v_lshlrev_b32 v{OWN+2*i}, 16, v{120+i}\nv_and_b32 v{OWN+2*i+1}, s{MASKHI}, v{120+i}')
    for i in range(8): a(f'v_mul_f32 v{OWN+i}, s78, v{OWN+i}')
    for i in range(4): a(f'v_cvt_pk_bf16_f32 v{120+i}, v{OWN+2*i}, v{OWN+2*i+1}')
    a(f'buffer_store_dwordx4 {vr(120,4)}, v10, {WSR}, s70 offen sc1')
    a('L_s3e:')
    a.stamp(11)
    stage4(a)
    a('s_branch L_fin\nL_idle:')
    a(f's_mul_i32 s33, s{XCD}, 6\ns_add_u32 s33, s33, s{JJ}\ns_sub_u32 s33, s33, 26\ns_cmp_ge_u32 s33, 10\ns_cbranch_scc1 L_fin')
    a(f's_lshr_b32 s{XCD}, s33, 1\ns_add_u32 s{XCD}, s{XCD}, 3\ns_and_b32 s{JJ}, s33, 1\ns_add_u32 s{JJ}, s{JJ}, 24\ns_branch L_s3s')

def xg(a, op, c, t):
    a(f'v_mov_b32 v{t}, v{c}\nv_permlane32_swap_b32 v{c}, v{t}\n{op} v{c}, v{c}, v{t}\nv_mov_b32 v{t}, v{c}\nv_permlane16_swap_b32 v{c}, v{t}\n{op} v{c}, v{c}, v{t}')
def tree(a, op3, op2, dst, regs):
    regs = list(regs); first = True
    a(f'{op3} v{dst}, v{regs[0]}, v{regs[1]}, v{regs[2]}'); k = 3
    while k + 1 < len(regs): a(f'{op3} v{dst}, v{dst}, v{regs[k]}, v{regs[k+1]}'); k += 2
    if k < len(regs): a(f'{op2} v{dst}, v{dst}, v{regs[k]}')
L_P, L_ML, L_R, L_SUM = 0, 8192, 16384, 49152
def tagcheck(a, tags, T):
    a(f'v_xor_b32 v{T}, s{NONCE}, v{tags[0]}\nv_xor_b32 v{T+1}, s{NONCE}, v{tags[1]}')
    for i in range(2, len(tags), 2): a(f'v_xor_b32 v{T+2}, s{NONCE}, v{tags[i]}\nv_xor_b32 v{T+3}, s{NONCE}, v{tags[i+1]}\nv_or3_b32 v{T+(i//2&1)}, v{T+(i//2&1)}, v{T+2}, v{T+3}')
    a(f'v_or_b32 v{T}, v{T}, v{T+1}\nv_cmp_ne_u32 vcc, 0, v{T}')
def gpoll(a, loads, tags, T):
    L = a.lab('gp'); E = a.lab('ge')
    a(f's_mov_b32 s33, {SPIN}\n{L}:'); loads(); a('s_waitcnt vmcnt(0)')
    tagcheck(a, tags, T)
    a(f's_sub_u32 s33, s33, 1\ns_cmp_eq_u32 s33, 0\ns_cbranch_scc1 {E}\ns_nop 1\ns_cbranch_vccnz {L}\n{E}:')
def stage4(a):
    GATE, XR, X1, T = 40, 228, 234, 240
    flag2(a, 71, 16)
    a(f's_cmp_ge_u32 s{JJ}, 24\ns_cbranch_scc1 L_fin')
    a(f's_lshr_b32 s60, s{XCD}, 1\ns_lshl_b32 s60, s60, 3\ns_and_b32 s33, s{JJ}, 7\ns_add_u32 s60, s60, s33\ns_and_b32 s61, s{XCD}, 1\ns_mul_i32 s61, s61, 3\ns_lshr_b32 s33, s{JJ}, 3\ns_add_u32 s61, s61, s33\ns_lshr_b32 s62, s{XCD}, 2')
    a(f's_mul_i32 s63, s61, 12\ns_mul_i32 s33, s{WAVE}, 3\ns_add_u32 s63, s63, s33')
    a.srd(S_A, P_X, 512 * 2304); a.srd(S_B, P_OUT, 512 * 2304)
    a(f'v_and_b32 v6, 15, v1\nv_mul_u32_u24 v4, 2304, v6\nv_lshrrev_b32 v7, 4, v1\nv_lshl_add_u32 v4, v7, 3, v4\nv_lshlrev_b32 v5, 4, v7\nv_lshlrev_b32 v11, 3, v1')
    a(f's_mul_i32 s64, s60, {16*2304}\ns_lshl_b32 s33, s63, 5\ns_add_u32 s64, s64, s33')
    for c in range(3): a(f'buffer_load_dwordx2 {vr(XR+2*c,2)}, v4, s[{S_A}:{S_A+3}], s64 offen offset:{32*c}')
    l16(a, 28)
    a(f's_mul_i32 s65, s62, 13824\ns_lshl_b32 s33, s63, 6\ns_add_u32 s65, s65, s33\ns_add_u32 s65, s65, {576*16}')
    GP = lambda c, p: 64 + 16 * c + 4 * p
    def gl():
        for p in range(4):
            a(f's_add_u32 s32, s65, {p*27648}')
            for c in range(3): a(f'buffer_load_dwordx4 {vr(GP(c,p),4)}, v5, {WSR}, s32 offen offset:{64*c} sc1')
    a(f's_lshr_b32 s33, s60, 2\ns_lshl_b32 s33, s33, 3\ns_add_u32 s33, s33, {F_S}\nv_add_u32 v16, s33, v1')
    a(f's_mul_i32 s66, s61, 3\ns_mul_i32 s33, s62, 72\ns_add_u32 s33, s33, s66\ns_add_u32 s33, s33, {F_VWO}\nv_subrev_u32 v17, 8, v1\nv_and_b32 v18, 3, v17\nv_mul_u32_u24 v18, 18, v18\nv_lshrrev_b32 v17, 2, v17\nv_add3_u32 v17, v17, v18, s33')
    a(f'v_cmp_gt_u32 vcc, 8, v1\nv_cndmask_b32 v16, v17, v16, vcc\ns_add_u32 s33, s66, {F_KQVO-20}\nv_min_u32 v17, 25, v1\nv_add_u32 v17, s33, v17\nv_add_u32 v18, 15, v17\nv_cmp_gt_u32 vcc, 23, v1\nv_cndmask_b32 v17, v18, v17, vcc')
    a(f'v_cmp_gt_u32 vcc, 20, v1\nv_cndmask_b32 v16, v17, v16, vcc\nv_lshlrev_b32 v16, 7, v16\nv_add_u32 v16, {WS_FLAG}, v16')
    for kb in range(5): a(f'v_cmp_eq_u32 vcc, {kb}, v6\nv_mov_b32 v{53+2*kb}, 0x3f803f80\nv_cndmask_b32 v{52+2*kb}, 0, v{53+2*kb}, vcc\nv_mov_b32 v{53+2*kb}, v{52+2*kb}')
    a(f's_lshl_b32 s66, s60, 13\ns_lshl_b32 s33, s{WAVE}, 11\ns_add_u32 s66, s66, s33\ns_add_u32 s66, s66, {WS_S}')
    a(f's_mul_i32 s33, s62, 72\ns_add_u32 s33, s33, s63\ns_lshl_b32 s67, s33, 13\ns_add_u32 s67, s67, {WS_VWO}\ns_mul_i32 s68, s33, 2560\ns_add_u32 s68, s68, {WS_KQ}\ns_add_u32 s69, s68, 0x5A000')
    a(f's_mul_i32 s71, s60, 36864\ns_add_u32 s71, s71, {WS_SC}\ns_mul_i32 s70, s61, 6144\ns_add_u32 s70, s70, s71')
    a(f's_lshl_b32 s33, s{WAVE}, 11\nv_add_u32 v8, s33, v28\ns_lshl_b32 s33, s{WAVE}, 9\nv_add_u32 v9, s33, v11')
    a(f's_mul_i32 s33, s{WAVE}, 6144\nv_add_u32 v12, s33, v28')
    a(f'v_lshrrev_b32 v13, 2, v6\nv_lshlrev_b32 v13, 8, v13\nv_and_b32 v14, 3, v1\nv_lshl_add_u32 v13, v14, 2, v13\nv_add_u32 v13, {5*1024+128}, v13')
    a(f'v_lshrrev_b32 v14, 5, v1\nv_lshl_add_u32 v14, v14, 4, v13\nv_add_u32 v14, s33, v14')
    a(f's_lshl_b32 s78, s{WAVE}, 10\ns_add_u32 s33, s{WAVE}, 4\ns_min_u32 s79, s33, 5\ns_lshl_b32 s79, s79, 10\nv_add_u32 v18, s78, v28\nv_add_u32 v19, s79, v28\nv_add_u32 v15, 4096, v18')
    a(f's_cmp_lt_u32 s{WAVE}, 2\ns_cselect_b32 s33, 0, 0x7f000000\nv_add_u32 v20, s33, v19\nv_lshlrev_b32 v21, 8, v7\nv_cmp_eq_u32 vcc, 3, v7\nv_mov_b32 v22, 0xff800000\nv_cndmask_b32 v22, 0, v22, vcc')
    gpoll(a, gl, [GP(c, p) + 3 for c in range(3) for p in range(4)], T)
    for c in range(3):
        for p in range(4): a.emit(unpack4(GP(c, p), T + p))
        b = GP(c, 0); g = GATE + 4 * c
        for i in range(4): a(f'v_add_f32 v{b+i}, v{b+i}, v{b+4+i}\nv_add_f32 v{b+8+i}, v{b+8+i}, v{b+12+i}')
        for i in range(4): a(f'v_add_f32 v{b+i}, v{b+i}, v{b+8+i}')
        a(f'v_cvt_pk_bf16_f32 v{b}, v{b}, v{b+1}\nv_cvt_pk_bf16_f32 v{b+2}, v{b+2}, v{b+3}\nv_and_b32 v{g+1}, s{MASKHI}, v{b}\nv_lshlrev_b32 v{g}, 16, v{b}\nv_and_b32 v{g+3}, s{MASKHI}, v{b+2}\nv_lshlrev_b32 v{g+2}, 16, v{b+2}')
    XF = 216
    for i in range(6): a(f'v_lshlrev_b32 v{XF+2*i}, 16, v{XR+i}\nv_and_b32 v{XF+2*i+1}, s{MASKHI}, v{XR+i}')
    a.stamp(12)
    a.poll_flags(16, 17)
    a.stamp(13)
    for u in range(2): a(f'buffer_load_dwordx4 {vr(160+4*u,4)}, v28, {WSR}, s66 offen offset:{1024*u} sc1')
    stok = a.vmtok()
    VW = lambda c, u: vr(64 + (c * 8 + u) * 4, 4)
    vt = {}
    for c in range(3):
        for u in range(8): fload(a, VW(c,u), u, 28, 67)
        a('s_add_u32 s67, s67, 8192'); vt[c] = a.vmtok()
    for k, (so, base) in enumerate(((68, 32), (69, 64))):
        for c in range(3):
            r = base + 10 * c
            a(f'buffer_load_dwordx4 {ar(r,4)}, v28, {WSR}, s{so} offen sc1\nbuffer_load_dwordx4 {ar(r+4,4)}, v28, {WSR}, s{so} offen offset:1024 sc1\nbuffer_load_dwordx2 {ar(r+8,2)}, v11, {WSR}, s{so} offen offset:2048 sc1\ns_add_u32 s{so}, s{so}, 2560')
        vt['kv' + str(k)] = a.vmtok()
    a.wvm(stok)
    E = 168
    for i in range(8): a(f'v_lshlrev_b32 v{E+2*i}, 16, v{160+i}\nv_and_b32 v{E+2*i+1}, s{MASKHI}, v{160+i}')
    tree(a, 'v_max3_f32', 'v_max_f32', 24, range(E, E + 16))
    xg(a, 'v_max_f32', 24, 25)
    a(f'v_mul_f32 v24, {LOG2E}, v24\ns_mov_b32 s78, {LOG2E}')
    for i in range(16): a(f'v_fma_f32 v{E+i}, v{E+i}, s78, -v24')
    for i in range(16): a(f'v_exp_f32 v{E+i}, v{E+i}')
    for i in range(8): a(f'v_cvt_pk_bf16_f32 v{160+i}, v{E+2*i}, v{E+2*i+1}')
    a(f'ds_write_b128 v8, v[160:163] offset:{L_P}\nds_write_b128 v8, v[164:167] offset:{L_P+1024}')
    for st in (8, 4, 2):
        for i in range(st): a(f'v_add_f32 v{E+i}, v{E+i}, v{E+st+i}')
    a(f'v_add_f32 v25, v{E}, v{E+1}')
    xg(a, 'v_add_f32', 25, 26)
    a(f'ds_write_b64 v9, v[24:25] offset:{L_ML}\ns_waitcnt lgkmcnt(0)\ns_barrier')
    for w in range(4): a(f'ds_read_b64 {vr(T+2*w,2)}, v11 offset:{L_ML+512*w}')
    for u in range(8): a(f'ds_read_b128 {ar(4*u,4)}, v28 offset:{L_P+1024*u}')
    a('s_waitcnt lgkmcnt(8)')
    a(f'v_max3_f32 v24, v{T}, v{T+2}, v{T+4}\nv_max_f32 v24, v24, v{T+6}')
    for w in range(4): a(f'v_sub_f32 v{T+2*w}, v{T+2*w}, v24')
    for w in range(4): a(f'v_exp_f32 v{T+2*w}, v{T+2*w}')
    a(f'v_mul_f32 v25, v{T}, v{T+1}')
    for w in range(1, 4): a(f'v_fma_f32 v25, v{T+2*w}, v{T+2*w+1}, v25')
    a('v_rcp_f32 v25, v25')
    for w in range(4): a(f'v_mul_f32 v{T+2*w}, v{T+2*w}, v25')
    a('s_waitcnt lgkmcnt(0)')
    AP = lambda c, w: 168 + (c * 4 + w) * 4 if c < 3 else None
    for c in range(3):
        a.wvm(vt[c])
        for h in range(2):
            for w in range(4): a(mf32(vr(AP(c,w),4), VW(c,2*w+h), ar(4*(2*w+h),4), vr(AP(c,w),4) if h else 0))
    assert AP(2, 3) + 4 <= XF
    for c in range(3):
        b = AP(c, 0)
        for i in range(4): a(f'v_mul_f32 v{b+i}, v{b+i}, v{T}')
        for w in range(1, 4):
            for i in range(4): a(f'v_fma_f32 v{b+i}, v{AP(c,w)+i}, v{T+2*w}, v{b+i}')
        for i in range(4): a(f'v_fma_f32 v{b+i}, v{b+i}, v{GATE+4*c+i}, v{XF+4*c+i}')
        for i in range(2): a(f'v_cvt_pk_bf16_f32 v{X1+2*c+i}, v{b+2*i}, v{b+2*i+1}')
    a.wvm(vt['kv0'])
    SC = lambda kb: vr(64 + 4 * kb, 4)
    for c in range(3):
        for kb in range(5): a(mf16(SC(5), ar(32+10*c+2*kb,2), vr(52+2*kb,2), SC(5) if c + kb else 0) + '\n' + mf16(SC(kb), ar(32+10*c+2*kb,2), vr(X1+2*c,2), SC(kb) if c else 0))
    a('s_mov_b32 s78, 0x3f803f80\nv_mov_b32 v24, 0\nv_mov_b32 v25, 0')
    for i in range(6): a(f'v_dot2_f32_bf16 v24, v{X1+i}, s78, v24\nv_dot2_f32_bf16 v25, v{X1+i}, v{X1+i}, v25')
    a('v_permlane32_swap_b32 v24, v25\nv_add_f32 v24, v24, v25\nv_mov_b32 v25, v24\nv_permlane16_swap_b32 v24, v25\nv_add_f32 v24, v24, v25')
    for u in range(6): a(f'ds_write_b128 v12, {SC(u)} offset:{L_R+1024*u}')
    a(f'ds_write_b32 v14, v24 offset:{L_R}\ns_waitcnt lgkmcnt(0)\ns_barrier')
    for q in range(2):
        for w in range(4): a(f'ds_read_b128 {vr(96+16*q+4*w,4)}, v{18+q} offset:{L_R+6144*w}')
    for q in range(2):
        a(f's_waitcnt lgkmcnt({4-4*q})')
        b = 96 + 16 * q
        for i in range(4): a(f'v_add_f32 v{b+i}, v{b+i}, v{b+4+i}\nv_add_f32 v{b+8+i}, v{b+8+i}, v{b+12+i}')
        for i in range(4): a(f'v_add_f32 v{b+i}, v{b+i}, v{b+8+i}')
        pack4(a, b)
        a(f'buffer_store_dwordx4 {vr(b,4)}, v{(18,20)[q]}, {WSR}, s70 offen sc1')
    a.stamp(14)
    PP = lambda q, p: 128 + (q * 6 + p) * 4
    def pl():
        for p in range(6):
            a(f's_add_u32 s32, s71, {p*6144}')
            for q in range(2): a(f'buffer_load_dwordx4 {vr(PP(q,p),4)}, v{18+q}, {WSR}, s32 offen sc1')
    for i in range(6): a(f'v_lshlrev_b32 v{XF+2*i}, 16, v{X1+i}\nv_and_b32 v{XF+2*i+1}, s{MASKHI}, v{X1+i}')
    gpoll(a, pl, [PP(q, p) + 3 for q in range(2) for p in range(6)], T)
    a.stamp(15)
    for q in range(2):
        for p in range(6): a.emit(unpack4(PP(q, p), T + (p & 3)))
        b = PP(q, 0)
        for i in range(4): a(f'v_add_f32 v{b+i}, v{b+i}, v{b+4+i}\nv_add_f32 v{b+8+i}, v{b+8+i}, v{b+12+i}\nv_add_f32 v{b+16+i}, v{b+16+i}, v{b+20+i}')
        for i in range(4): a(f'v_add_f32 v{b+i}, v{b+i}, v{b+8+i}')
        for i in range(4): a(f'v_add_f32 v{b+i}, v{b+i}, v{b+16+i}')
        a(f'ds_write_b128 v{(18,15)[q]}, {vr(b,4)} offset:{L_SUM}')
    a('s_waitcnt lgkmcnt(0)\ns_barrier')
    a(f'ds_read_b32 v24, v13 offset:{L_SUM}\nds_read_b32 v25, v13 offset:{L_SUM+16}')
    Z, CS = 64, 96
    for kb in range(5): a(f'ds_read_b128 {vr(CS+4*kb,4)}, v21 offset:{L_SUM+5120+16*kb}\nds_read_b128 {vr(Z+4*kb,4)}, v28 offset:{L_SUM+1024*kb}')
    a('s_waitcnt lgkmcnt(10)')
    inv = '0x3a638e39'
    a(f'v_mul_f32 v24, {inv}, v24\nv_mul_f32 v25, {inv}, v25\nv_fma_f32 v25, -v24, v24, v25\nv_max_f32 v25, 0, v25\nv_add_f32 v25, 0x3727c5ac, v25\nv_rsq_f32 v25, v25\nv_mul_f32 v25, 0x3d2e1a93, v25')
    for kb in range(5):
        a(f's_waitcnt lgkmcnt({8-2*kb})')
        for i in range(4): a(f'v_fma_f32 v{Z+4*kb+i}, -v24, v{CS+4*kb+i}, v{Z+4*kb+i}')
    for i in range(20): a(f'v_mul_f32 v{Z+i}, v{Z+i}, v25' if i < 17 else f'v_fma_f32 v{Z+i}, v{Z+i}, v25, v22')
    tree(a, 'v_max3_f32', 'v_max_f32', 24, range(Z, Z + 20))
    xg(a, 'v_max_f32', 24, 25)
    for i in range(20): a(f'v_sub_f32 v{Z+i}, v{Z+i}, v24')
    for i in range(20): a(f'v_exp_f32 v{Z+i}, v{Z+i}')
    for i in range(10): a(f'v_add_f32 v{CS+i}, v{Z+i}, v{Z+10+i}')
    for i in range(5): a(f'v_add_f32 v{CS+i}, v{CS+i}, v{CS+5+i}')
    a(f'v_add_f32 v{CS}, v{CS}, v{CS+1}\nv_add_f32 v{CS+2}, v{CS+2}, v{CS+3}\nv_add_f32 v24, v{CS}, v{CS+4}\nv_add_f32 v24, v24, v{CS+2}')
    xg(a, 'v_add_f32', 24, 25)
    a('v_rcp_f32 v24, v24')
    for i in range(20): a(f'v_mul_f32 v{Z+i}, v{Z+i}, v24')
    for i in range(10): a(f'v_cvt_pk_bf16_f32 v{CS+i}, v{Z+2*i}, v{Z+2*i+1}')
    O = 128
    for c in range(3): a(mf32(vr(O+4*c,4), ar(64+10*c,4), vr(CS,4), 0))
    for c in range(3): a(mf32(vr(O+4*c,4), ar(68+10*c,4), vr(CS+4,4), vr(O+4*c,4)))
    for c in range(3): a(mf16(vr(O+4*c,4), ar(72+10*c,2), vr(CS+8,2), vr(O+4*c,4)))
    for c in range(3):
        b = O + 4 * c
        a(f'v_cvt_pk_bf16_f32 v{b}, v{b}, v{b+1}\nv_cvt_pk_bf16_f32 v{b+2}, v{b+2}, v{b+3}\nv_and_b32 v{b+1}, s{MASKHI}, v{b}\nv_lshlrev_b32 v{b}, 16, v{b}\nv_and_b32 v{b+3}, s{MASKHI}, v{b+2}\nv_lshlrev_b32 v{b+2}, 16, v{b+2}')
        for i in range(4): a(f'v_add_f32 v{b+i}, v{b+i}, v{XF+4*c+i}')
        a(f'v_cvt_pk_bf16_f32 v{b}, v{b}, v{b+1}\nv_cvt_pk_bf16_f32 v{b+1}, v{b+2}, v{b+3}')
        a(f'buffer_store_dwordx2 {vr(b,2)}, v4, s[{S_B}:{S_B+3}], s64 offen offset:{32*c}')
    a.stamp(7)
PH = {'pre3': pre3, 'wo': wo, 'main': main, 'side': side}
def build(prof=False, opt=None): return gen.build(prof, opt, PH)
if __name__ == '__main__':
    opt = eval(sys.argv[1]) if len(sys.argv) > 1 else {}
    open('standalone__pixart__diffusion.s', 'w').write(build(False, opt))
```

```python
import sys; sys.path.insert(0, 'work')
from fw import *
NAME = 'standalone__pixart__diffusion_kernel'
WS_GEN = 0x1C000
WS_MOD = 0
WS_FLAG = 0x20000
F_QKV, F_KVC, F_VWO, F_S, F_KQ, F_VO = 0, 216, 252, 396, 460, 496
WS_PROF = 0x80000
WS_QKV = 0x100000
WS_KVC = 0x500000
WS_VWO = 0x600000
WS_S = 0x740000
WS_KQ = 0x780000
WS_SC = 0x840000
WS_H = 0xA00000
F_H = 544
WS_SIZE = 0xC00000
RING = 36864
L_SCALE = 147456; L_SHIFT = 152064; L_STATS = 156672; L_SILU = 158720; L_MODRED = 163328
S_WS = 4; S_A = 8; S_B = 12; S_C = 16; S_D = 20
NONCE, WAVE, XCD, JJ, TT, CT, RT, RB = 24, 25, 26, 27, 28, 29, 30, 31
P_X, P_C, P_Y, P_WQKV, P_WO, P_WQC, P_WKV, P_WOC, P_WMOD, P_OUT, P_DBG, P_WS = 36, 38, 40, 42, 44, 46, 48, 50, 52, 54, 56, 58
MASKHI = 100
SPIN = 20000
class G(Asm):
    def __init__(s, prof=False, opt=None):
        super().__init__(); s.prof = prof; s.opt = opt or {}; s.late = False
    def o(s, k, d): return s.opt.get(k, d)
    def srd(s, d, p, size):
        s(f's_mov_b32 s{d}, s{p}\ns_mov_b32 s{d+1}, s{p+1}\ns_mov_b32 s{d+2}, {size}\ns_mov_b32 s{d+3}, 0x20000')
    def stamp(s, i):
        if s.prof and (s.o('pa', 0) != 0) != (s.late or i in (0, 2, 6, 8)) or (s.prof and not s.late and i in (0, 2, 6, 8)): s(f's_memrealtime s[34:35]\ns_waitcnt lgkmcnt(0)\ns_mov_b32 s{80+i}, s34')
    def dma(s, va, srd, sbase, soff, lds, flags='nt', ldsbase=RB):
        s(f's_add_u32 m0, s{ldsbase}, {lds}\ns_add_u32 s32, s{sbase}, {soff}\nbuffer_load_dwordx4 v{va}, s[{srd}:{srd+3}], s32 offen {flags} lds')
    def dma4(s, va, n, srd, sbase, soff, lds, flags='nt', ldsbase=RB, i0=0):
        s(f's_add_u32 m0, s{ldsbase}, {lds}\ns_add_u32 s32, s{sbase}, {soff}')
        for i in range(i0, i0 + n): s(f'buffer_load_dwordx4 v{va+i}, s[{srd}:{srd+3}], s32 offen offset:{1024*i} {flags} lds')
    def emit(s, items):
        for it in items:
            if callable(it): it()
            else: s(it)
    def flush_prof(s):
        if not s.prof: return
        s('s_waitcnt vmcnt(0) lgkmcnt(0)')
        for q in range(4):
            for i in range(4): s(f'v_mov_b32 v{4+i}, s{80+4*q+i}')
            s(f's_lshl_b32 s32, s2, 8\ns_lshl_b32 s33, s{WAVE}, 6\ns_add_u32 s32, s32, s33\ns_add_u32 s32, s32, {WS_PROF + 16*q}')
            s(f'v_mov_b32 v3, 0\nbuffer_store_dwordx4 v[4:7], v3, s[{S_WS}:{S_WS+3}], s32 offen\ns_waitcnt vmcnt(0)')
    def poll_flags(s, vaddr, vtmp):
        L = s.lab('poll'); E = s.lab('pe')
        s(f's_mov_b32 s33, {SPIN}\n{L}:')
        s(f'buffer_load_dword v{vtmp}, v{vaddr}, s[{S_WS}:{S_WS+3}], 0 offen sc1\ns_waitcnt vmcnt(0)')
        s(f'v_cmp_ne_u32 vcc, s{NONCE}, v{vtmp}\ns_sub_u32 s33, s33, 1\ns_cmp_eq_u32 s33, 0\ns_cbranch_scc1 {E}\ns_nop 1\ns_cbranch_vccnz {L}\n{E}:')
    def set_flag(s, sidx, vt):
        s(f's_waitcnt vmcnt(0)\ns_barrier')
        s(f's_lshl_b32 s32, s{sidx}, 7\ns_add_u32 s32, s32, {WS_FLAG}')
        s(f'v_cmp_eq_u32 vcc, 0, v0\nv_mov_b32 v{vt}, 0x7fffffff\nv_cndmask_b32 v{vt}, v{vt}, 0, vcc\nv_mov_b32 v{vt+1}, s{NONCE}')
        s(f'buffer_store_dword v{vt+1}, v{vt}, s[{S_WS}:{S_WS+3}], s32 offen sc1')

def prologue(a):
    a(f's_cmp_ge_u32 s2, 256\ns_cbranch_scc1 L_end')
    a('s_load_dwordx16 s[36:51], s[0:1], 0\ns_load_dwordx8 s[52:59], s[0:1], 64')
    a.stamp(0)
    if a.prof and a.o('pa', 0): a('s_memtime s[34:35]\ns_waitcnt lgkmcnt(0)\ns_mov_b32 s94, s34')
    a(f'v_lshrrev_b32 v2, 6, v0\nv_and_b32 v1, 63, v0\nv_readfirstlane_b32 s{WAVE}, v2')
    a(f's_and_b32 s{XCD}, s2, 7\ns_lshr_b32 s{JJ}, s2, 3\ns_mov_b32 s{MASKHI}, 0xffff0000')
    a(f's_mul_i32 s{RB}, s{WAVE}, {RING}')
    if a.o('cw', 0):
        a(f's_getpc_b64 s[60:61]\nL_pc:\nv_lshlrev_b32 v4, 8, v0\nv_mov_b32 v5, 0\nv_min_u32 v4, L_end-L_pc-128, v4\nv_lshl_add_u64 v[4:5], v[4:5], 0, s[60:61]')
        a('global_load_dword v255, v[4:5], off nt\nglobal_load_dword v255, v[4:5], off offset:128 nt')
    a('s_waitcnt lgkmcnt(0)')
    a.srd(S_WS, P_WS, WS_SIZE)
    a(f'v_mov_b32 v2, {WS_GEN}\nbuffer_load_dword v3, v2, s[{S_WS}:{S_WS+3}], 0 offen sc1')
    a.gtok = a.vmtok()
def get_nonce(a):
    a.wvm(a.gtok)
    a(f'v_readfirstlane_b32 s{NONCE}, v3\ns_mul_i32 s{NONCE}, s{NONCE}, 0x9E3779B1\ns_add_u32 s{NONCE}, s{NONCE}, 0x7F4A7C15')

def strip_dma_addr(a, d, stride, t0, t1):
    a(f'v_lshrrev_b32 v{t0}, 3, v1\nv_mul_u32_u24 v{t0}, {stride}, v{t0}\nv_lshrrev_b32 v{t1}, 4, v1\nv_lshlrev_b32 v{t1}, 1, v{t1}\nv_and_b32 v{d}, 7, v1\nv_xor_b32 v{t1}, v{t1}, v{d}\nv_lshl_add_u32 v{d}, v{t1}, 4, v{t0}')
    for i in range(1, 4): a(f'v_add_u32 v{d+i}, {i*(8*stride-1024)}, v{d}')
def strip_tr_base(a, d, t0, t1, slotstride=1024):
    a(f'v_lshrrev_b32 v{t0}, 5, v1\nv_mul_u32_u24 v{d}, {slotstride}, v{t0}\nv_bfe_u32 v{t0}, v1, 2, 3\nv_lshl_add_u32 v{d}, v{t0}, 7, v{d}\nv_lshrrev_b32 v{t1}, 1, v{t0}\nv_and_b32 v{t0}, 3, v1\nv_lshl_add_u32 v{d}, v{t0}, 3, v{d}')
def unpack4(b, t):
    return [f'v_perm_b32 v{t}, v{b+1}, v{b}, s72', f'v_perm_b32 v{b+3}, v{b+2}, v{t}, s73']
def pack4(a, b):
    a(f'v_perm_b32 v{b}, v{b}, v{b+3}, s74\nv_perm_b32 v{b+1}, v{b+1}, v{b+3}, s75\nv_perm_b32 v{b+2}, v{b+2}, v{b+3}, s76\nv_mov_b32 v{b+3}, s{NONCE}')
def sels(a): a('s_mov_b32 s72, 0x0c04000c\ns_mov_b32 s73, 0x04020100\ns_mov_b32 s74, 0x07060501\ns_mov_b32 s75, 0x07060502\ns_mov_b32 s76, 0x07060503')

def phaseA(a):
    X = lambda j, tb: 64 + (j * 2 + tb) * 4
    T = 240; OWN = 32; XS = 208
    ACC = lambda cb, tb: (ar((cb * 2 + tb) * 16, 16) if cb < 3 else vr(OWN + tb * 16, 16))
    WF = lambda j, cb, n=4, o=0: ar(96 + (j % 9) * 16 + cb * 4 + o, n)
    a(f's_mul_i32 s{TT}, s{XCD}, 24\ns_add_u32 s{TT}, s{TT}, s{JJ}\ns_lshl_b32 s33, s{XCD}, 3\ns_add_u32 s33, s33, s{JJ}\ns_add_u32 s33, s33, 168\ns_cmp_lt_u32 s{JJ}, 24\ns_cselect_b32 s{TT}, s{TT}, s33')
    a(f's_lshr_b32 s{CT}, s{TT}, 3\ns_and_b32 s{RT}, s{TT}, 7')
    a.srd(S_B, P_WMOD, 1152 * 13824)
    strip_dma_addr(a, 4, 13824, 8, 9)
    a(f'v_add_u32 v5, {32*13824-1024}, v4\nv_add_u32 v6, {2*(32*13824-1024)}, v4')
    a(f's_and_b32 s60, s{TT}, 3\ns_mul_i32 s61, s60, 36\ns_add_u32 s61, s61, s{WAVE}\ns_mul_i32 s61, s61, {8*13824}\ns_lshr_b32 s62, s{TT}, 2\ns_lshl_b32 s33, s62, 7\ns_add_u32 s61, s61, s33')
    for q in range(3): a.dma4(4, 3, S_B, 61, 96 * q * 13824, (18 + 3 * q) * 1024, flags=a.o('mnt', 'nt'))
    mtok = a.vmtok()
    a.srd(S_A, P_C, 4608); a.srd(S_C, P_X, 512 * 2304)
    a(f's_and_b32 s33, s{WAVE}, 1\ns_mul_i32 s63, s33, 2304\ns_mul_i32 s64, s33, 576\ns_lshr_b32 s33, s{WAVE}, 1\ns_mul_i32 s33, s33, 288\ns_add_u32 s64, s64, s33\ns_add_u32 s63, s63, s33\ns_mul_i32 s33, s60, 576\ns_add_u32 s63, s63, s33')
    a(f'v_lshlrev_b32 v8, 3, v1\nv_min_u32 v8, 280, v8\nbuffer_load_dwordx2 v[240:241], v8, s[{S_A}:{S_A+3}], s63 offen')
    ctok = a.vmtok()
    a(f's_add_u32 s64, s64, {L_SILU}\nv_add_u32 v18, s64, v8')
    a.srd(S_D, P_WQKV, 1152 * 6912)
    a.stamp(13)
    a(f's_lshl_b32 s77, s{XCD}, 1\ns_and_b32 s33, s{JJ}, 1\ns_add_u32 s77, s77, s33\ns_lshr_b32 s78, s{JJ}, 1\ns_cmp_ge_u32 s78, 9\ns_cselect_b32 s33, 9, 0\ns_cselect_b32 s79, 0x7f000000, 0\ns_sub_u32 s78, s78, s33')
    a(f's_mul_i32 s65, s77, {32*2304}\ns_lshl_b32 s33, s78, 8\ns_lshl_b32 s32, s{WAVE}, 6\ns_add_u32 s33, s33, s32\ns_add_u32 s33, s33, s65')
    a('v_and_b32 v9, 31, v1\nv_mul_u32_u24 v9, 2304, v9\nv_lshrrev_b32 v10, 5, v1\nv_lshl_add_u32 v9, v10, 4, v9')
    for u in range(2): a(f'buffer_load_dwordx4 {vr(XS+4*u,4)}, v9, s[{S_C}:{S_C+3}], s33 offen offset:{32*u}')
    a('v_lshrrev_b32 v9, 3, v1\nv_mul_u32_u24 v9, 2304, v9\nv_lshrrev_b32 v10, 4, v1\nv_and_b32 v11, 7, v1')
    a(f'v_xor_b32 v4, v11, v10\nv_xor_b32 v5, 4, v4\nv_lshl_add_u32 v4, v4, 4, v9\nv_lshl_add_u32 v5, v5, 4, v9\nv_add_u32 v5, {8*2304-1024}, v5')
    a(f'v_add_u32 v6, {2*(8*2304-1024)}, v4\nv_add_u32 v7, {2*(8*2304-1024)}, v5')
    a(f's_mul_i32 s60, s{WAVE}, 576\ns_and_b32 s33, s{WAVE}, 1\ns_lshl_b32 s63, s33, 6\ns_add_u32 s63, s63, s60\ns_xor_b32 s33, s33, 1\ns_lshl_b32 s64, s33, 9\ns_add_u32 s64, s64, s60')
    a('s_add_u32 s66, s65, s64\ns_add_u32 s65, s65, s63')
    xtok = {}
    a('v_lshrrev_b32 v9, 2, v1\nv_mul_u32_u24 v9, 2304, v9\nv_and_b32 v11, 3, v1\nv_xor_b32 v8, v11, v10\nv_lshl_add_u32 v8, v8, 4, v9')
    a(f'v_add_u32 v9, {16*2304-1024}, v8')
    def xdma(L):
        if L < 4:
            a(f's_add_u32 s33, s78, {L}\ns_and_b32 s33, s33, 3\ns_lshl_b32 s33, s33, 7\ns_add_u32 s96, s65, s33')
            a.dma4(4, 4, S_C, 96, 0, L * 4096, flags=a.o('xnt', '') if L < a.o('xntn', 1) else '')
        else: a.dma4(8, 2, S_C, 66, 0, 16384, flags='')
        xtok[L] = a.vmtok()
    XE = a.o('xe', 0)
    for L in range(XE): xdma(L)
    a(f's_lshr_b32 s33, s{JJ}, 3\ns_mul_i32 s33, s33, 3\ns_add_u32 s33, s33, s{RT}\ns_lshl_b32 s99, s33, 1\ns_lshr_b32 s33, s{RT}, 2\ns_add_u32 s99, s99, s33\ns_cmp_ge_u32 s99, 18\ns_cselect_b32 s33, 18, 0\ns_sub_u32 s99, s99, s33')
    if not a.o('rot', 1): a('s_mov_b32 s99, 0')
    a(f's_mul_i32 s68, s{WAVE}, {288*6912}\ns_lshl_b32 s33, s{CT}, 8\ns_add_u32 s68, s68, s33\ns_mul_i32 s67, s99, {16*6912}\ns_add_u32 s67, s67, s68\ns_add_u32 s68, s68, {288*6912}')
    a('v_lshrrev_b32 v16, 4, v1\nv_mul_u32_u24 v12, 6912, v16\nv_lshlrev_b32 v16, 2, v16\nv_and_b32 v17, 15, v1\nv_xor_b32 v16, v16, v17\nv_lshl_add_u32 v12, v16, 4, v12')
    for i in range(1, 4): a(f'v_add_u32 v{12+i}, {i*(4*6912-1024)}, v12')
    wtok = {}
    SL = lambda j: (7, 8, 5, 6, 0, 1, 2, 3, 4)[j % 9] * 4096
    WE = a.o('we', 2)
    def wdma(j):
        a(f's_add_u32 m0, s{RB}, {SL(j)}')
        for i in range(4): a(f'buffer_load_dwordx4 v{12+i}, s[{S_D}:{S_D+3}], s67 offen offset:{1024*i} {"nt" if j < a.o("wntn", 2) else ""} lds')
        a(f's_add_u32 s67, s67, {16*6912}\ns_cmp_ge_u32 s67, s68\ns_cselect_b32 s33, {288*6912}, 0\ns_sub_u32 s67, s67, s33')
        wtok[j] = a.vmtok()
    for j in range(WE): wdma(j)
    sels(a)
    a.stamp(9)
    a.wvm(ctok)
    for i in range(2):
        r = 240 + i; t0, t1 = 244 + 4 * i, 245 + 4 * i; u0, u1 = t0 + 2, t0 + 3
        a.emit([f'v_lshlrev_b32 v{t0}, 16, v{r}', f'v_and_b32 v{t1}, s{MASKHI}, v{r}', f'v_mul_f32 v{u0}, 0xbfb8aa3b, v{t0}', f'v_mul_f32 v{u1}, 0xbfb8aa3b, v{t1}',
                f'v_exp_f32 v{u0}, v{u0}', f'v_exp_f32 v{u1}, v{u1}', f'v_add_f32 v{u0}, 1.0, v{u0}', f'v_add_f32 v{u1}, 1.0, v{u1}',
                f'v_rcp_f32 v{u0}, v{u0}', f'v_rcp_f32 v{u1}, v{u1}', f'v_mul_f32 v{t0}, v{t0}, v{u0}', f'v_mul_f32 v{t1}, v{t1}, v{u1}', f'v_cvt_pk_bf16_f32 v{r}, v{t0}, v{t1}'])
    a('ds_write_b64 v18, v[240:241]')
    a(f'v_and_b32 v16, 1, v1\nv_mul_u32_u24 v16, 576, v16\nv_lshrrev_b32 v19, 4, v1\nv_lshl_add_u32 v16, v19, 3, v16\nv_add_u32 v16, {L_SILU}, v16')
    strip_tr_base(a, 17, 18, 20, RING)
    a(f'v_xor_b32 v20, s{WAVE}, v20\nv_lshl_add_u32 v17, v20, 5, v17\nv_add_u32 v18, {2*RING}, v17')
    a(f'v_and_b32 v20, 15, v1\nv_mul_u32_u24 v21, 13824, v20\nv_lshl_add_u32 v21, v19, 4, v21\nv_cmp_gt_u32 vcc, 2, v20\nv_mov_b32 v19, 0x7fffffff\nv_cndmask_b32 v19, v19, v21, vcc')
    a(f's_and_b32 s60, s{TT}, 3\ns_mul_i32 s60, s60, 27648\ns_lshl_b32 s62, s62, 8\ns_add_u32 s60, s60, s62\ns_lshl_b32 s33, s{WAVE}, 6\ns_add_u32 s60, s60, s33')
    get_nonce(a)
    a.wvm(mtok); a('s_waitcnt lgkmcnt(0)\ns_barrier'); a.stamp(1)
    for i in range(9):
        a(f'ds_read_b64_tr_b16 {vr(112+4*i,2)}, v17 offset:{(18+i)*1024}\nds_read_b64_tr_b16 {vr(114+4*i,2)}, v18 offset:{(18+i)*1024}')
        a(f'ds_read_b64 {vr(64+4*i,2)}, v16 offset:{64*i}\nds_read_b64 {vr(66+4*i,2)}, v16 offset:{64*i+32}')
        if i >= 2:
            a('s_waitcnt lgkmcnt(8)')
            a(f'v_mfma_f32_16x16x32_bf16 {vr(T,4)}, {vr(112+4*(i-2),4)}, {vr(64+4*(i-2),4)}, {vr(T,4) if i > 2 else 0}')
    a(f's_waitcnt lgkmcnt(0)\ns_barrier')
    for i in (7, 8): a(f'v_mfma_f32_16x16x32_bf16 {vr(T,4)}, {vr(112+4*i,4)}, {vr(64+4*i,4)}, {vr(T,4)}')
    pack4(a, T)
    a(f'buffer_store_dwordx4 {vr(T,4)}, v19, s[{S_WS}:{S_WS+3}], s60 offen sc1')
    a.stamp(2)
    for L in range(XE, 5): xdma(L)
    W1 = a.o('w1', 4)
    for j in range(WE, W1): wdma(j)
    XA = 248
    a('v_and_b32 v16, 31, v1\nv_lshrrev_b32 v17, 5, v1\nv_lshrrev_b32 v18, 3, v16\nv_lshlrev_b32 v18, 10, v18\nv_and_b32 v19, 7, v16\nv_lshl_add_u32 v18, v19, 7, v18')
    a(f'v_add_u32 v18, s{RB}, v18\nv_bfe_u32 v19, v16, 1, 3\nv_xor_b32 v19, v19, v17')
    for jj in range(4): a(f'v_xor_b32 v20, {2*jj}, v19\nv_lshl_add_u32 v{XA+jj}, v20, 4, v18')
    a('v_lshrrev_b32 v18, 4, v16\nv_lshlrev_b32 v18, 10, v18\nv_and_b32 v19, 15, v16\nv_lshl_add_u32 v18, v19, 6, v18')
    a(f'v_add_u32 v18, s{RB}, v18\nv_bfe_u32 v19, v16, 2, 2\nv_xor_b32 v19, v19, v17')
    for jj in range(2): a(f'v_xor_b32 v20, {2*jj}, v19\nv_lshl_add_u32 v{XA+4+jj}, v20, 4, v18')
    a('v_lshrrev_b32 v16, 5, v1\nv_bfe_u32 v17, v1, 2, 2\nv_lshlrev_b32 v18, 11, v16\nv_lshl_add_u32 v18, v17, 8, v18\nv_and_b32 v19, 1, v1\nv_lshl_add_u32 v18, v19, 3, v18')
    a(f'v_add_u32 v18, s{RB}, v18\nv_bfe_u32 v19, v1, 4, 1\nv_lshlrev_b32 v19, 1, v19\nv_bfe_u32 v30, v1, 1, 1\nv_add_u32 v19, v19, v30\nv_lshlrev_b32 v17, 2, v17\nv_xor_b32 v19, v19, v17')
    for cb in range(4):
        a(f's_add_u32 s33, s{WAVE}, {cb+1}\ns_and_b32 s33, s33, 3\ns_lshl_b32 s33, s33, 2\nv_xor_b32 v30, s33, v19\nv_lshl_add_u32 v{24+cb}, v30, 4, v18')
    a(f's_lshr_b32 s33, s77, 3\ns_mul_i32 s71, s33, 13824\ns_lshl_b32 s33, s78, 9\ns_add_u32 s71, s71, s33\ns_lshl_b32 s33, s{WAVE}, 7\ns_add_u32 s71, s71, s33')
    a('v_lshrrev_b32 v16, 4, v1\nv_mul_u32_u24 v16, 27648, v16\nv_bfe_u32 v31, v1, 3, 1\nv_mul_u32_u24 v17, 4608, v31\nv_and_b32 v18, 7, v1\nv_lshl_add_u32 v17, v18, 4, v17\nv_add_u32 v16, v16, v17\nv_cvt_f32_u32 v31, v31')
    a(f's_lshl_b32 s33, s{WAVE}, 10\ns_add_u32 s33, s33, {L_SCALE}\nv_lshlrev_b32 v19, 4, v1\nv_add_u32 v17, s33, v19\nv_lshrrev_b32 v18, 5, v1\nv_lshlrev_b32 v18, 5, v18\nv_add_u32 v18, s33, v18\nv_mov_b32 v28, v19\nv_add_u32 v29, 73728, v19\nv_add_u32 v19, s79, v19')
    a(f's_mul_i32 s70, s77, 72\ns_lshl_b32 s33, s78, 3\ns_add_u32 s70, s70, s33\ns_lshl_b32 s33, s{WAVE}, 1\ns_add_u32 s70, s70, s33\ns_lshl_b32 s64, s70, 6\ns_add_u32 s64, s64, {WS_FLAG+F_H*128}\ns_lshl_b32 s70, s70, 10\ns_add_u32 s70, s70, {WS_H}')
    a('v_mov_b32 v20, 0\nv_mov_b32 v21, 0\nv_mov_b32 v22, 0\nv_mov_b32 v23, 0\ns_mov_b32 s69, 0x3f803f80')
    for L in range(5):
        a.wvm(xtok[L])
        n = 4 if L < 4 else 2
        for i in range(n): a(f'ds_read_b128 {vr(64+16*L+4*i,4)}, v{XA+i+(L>>2)*4} offset:{4096*L}')
        a('s_waitcnt lgkmcnt(0)')
        for i in range(4 * n): a(f'v_dot2_f32_bf16 v{20+(i&1)}, v{64+16*L+i}, s69, v{20+(i&1)}\nv_dot2_f32_bf16 v{22+(i&1)}, v{64+16*L+i}, v{64+16*L+i}, v{22+(i&1)}')
        if L == a.o('pollpos', 2): a(f'buffer_load_dwordx4 v[32:35], v16, s[{S_WS}:{S_WS+3}], s71 offen sc1'); ptok = a.vmtok()
    a.stamp(3)
    a('v_add_f32 v20, v20, v21\nv_add_f32 v22, v22, v23\nv_permlane32_swap_b32 v20, v22\nv_add_f32 v20, v20, v22')
    a(f's_lshl_b32 s33, s{WAVE}, 8\nv_lshlrev_b32 v5, 2, v1\nv_add_u32 v5, s33, v5\nv_and_b32 v4, 31, v1\nv_lshlrev_b32 v4, 2, v4\nv_add_u32 v4, {L_STATS}, v4\nds_write_b32 v5, v20 offset:{L_STATS}\ns_waitcnt lgkmcnt(0)\ns_barrier' if L_STATS < 65536 else
      f's_lshl_b32 s33, s{WAVE}, 8\ns_add_u32 s33, s33, {L_STATS}\nv_lshlrev_b32 v5, 2, v1\nv_add_u32 v5, s33, v5\nv_and_b32 v4, 31, v1\nv_lshlrev_b32 v4, 2, v4\nv_add_u32 v4, {L_STATS}, v4\nds_write_b32 v5, v20\ns_waitcnt lgkmcnt(0)\ns_barrier')
    for w in range(4): a(f'ds_read2_b32 {vr(T+2*w,2)}, v4 offset0:{64*w} offset1:{64*w+32}')
    def w_reads(j):
        o = [lambda: a.wvm(wtok[j])]
        for cb in range(4): o += [f'ds_read_b64_tr_b16 {WF(j,cb,2)}, v{24+cb} offset:{SL(j)}', f'ds_read_b64_tr_b16 {WF(j,cb,2,2)}, v{24+cb} offset:{SL(j)+1024}']
        return o
    for i in range(8): a(f'v_lshlrev_b32 v{40+2*i}, 16, v{XS+i}\nv_and_b32 v{41+2*i}, s{MASKHI}, v{XS+i}')
    a('s_waitcnt lgkmcnt(0)')
    a(f'v_add_f32 v{T}, v{T}, v{T+2}\nv_add_f32 v{T+1}, v{T+1}, v{T+3}\nv_add_f32 v{T+4}, v{T+4}, v{T+6}\nv_add_f32 v{T+5}, v{T+5}, v{T+7}')
    a(f'v_add_f32 v{T}, v{T}, v{T+4}\nv_add_f32 v{T+1}, v{T+1}, v{T+5}')
    inv = '0x3a638e39'
    a(f'v_mul_f32 v{T}, {inv}, v{T}\nv_mul_f32 v{T+1}, {inv}, v{T+1}\nv_fma_f32 v{T+1}, -v{T}, v{T}, v{T+1}\nv_max_f32 v{T+1}, 0, v{T+1}\nv_add_f32 v{T+1}, 0x3727c5ac, v{T+1}')
    a(f'v_rsq_f32 v4, v{T+1}\nv_mul_f32 v5, v{T}, v4\nv_sub_f32 v5, 0, v5')
    for i in range(8): a(f'v_pk_fma_f32 {vr(40+2*i,2)}, {vr(40+2*i,2)}, v[4:5], v[4:5] op_sel:[0,0,1] op_sel_hi:[1,0,1]')
    a.stamp(4)
    Lp = a.lab('mp'); Le = a.lab('me'); Lc = a.lab('mc')
    a(f's_mov_b32 s33, {SPIN}'); a.wvm(ptok); a(f's_branch {Lc}\n{Lp}:')
    a.L.append(f'buffer_load_dwordx4 v[32:35], v16, s[{S_WS}:{S_WS+3}], s71 offen sc1'); a('s_waitcnt vmcnt(0)')
    a(f'{Lc}:\nv_cmp_ne_u32 vcc, s{NONCE}, v35\ns_sub_u32 s33, s33, 1\ns_cmp_eq_u32 s33, 0\ns_cbranch_scc1 {Le}\ns_nop 1\ns_cbranch_vccnz {Lp}\n{Le}:')
    a.stamp(5)
    a.emit(unpack4(32, T))
    a('v_permlane32_swap_b32 v32, v33\nv_permlane32_swap_b32 v34, v35\nv_add_f32 v32, v32, v33\nv_add_f32 v34, v34, v35\nv_permlane16_swap_b32 v32, v34\nv_add_f32 v32, v32, v34')
    a(f'v_cvt_pk_bf16_f32 v32, v32, v32\nv_and_b32 v32, s{MASKHI}, v32\nv_add_f32 v32, v31, v32\nv_cvt_pk_bf16_f32 v32, v32, v32\nv_and_b32 v32, s{MASKHI}, v32')
    a(f'v_and_b32 v6, 15, v1\nv_lshlrev_b32 v6, 4, v6\nv_bfe_u32 v7, v1, 4, 1\nv_lshl_add_u32 v6, v7, 3, v6\nv_lshrrev_b32 v7, 5, v1\nv_lshl_add_u32 v6, v7, 2, v6\ns_lshl_b32 s33, s{WAVE}, 10\ns_add_u32 s33, s33, {L_SCALE}\nv_add_u32 v6, s33, v6')
    a('ds_write_b32 v6, v32')
    for u in range(2):
        for q in range(4): a(f'ds_read_b128 {vr(216+16*u+4*q,4)}, v18 offset:{64*u+16*(q&1)+128*(q>>1)}')
    for u in range(2):
        a(f's_waitcnt lgkmcnt({4-4*u})')
        for i in range(4): a(f'v_pk_fma_f32 {vr(40+8*u+2*i,2)}, {vr(40+8*u+2*i,2)}, {vr(216+16*u+8+2*i,2)}, {vr(216+16*u+2*i,2)}')
        for i in range(4): a(f'v_cvt_pk_bf16_f32 v{XS+4*u+i}, v{40+8*u+2*i}, v{41+8*u+2*i}')
        a(f'buffer_store_dwordx4 {vr(XS+4*u,4)}, v19, s[{S_WS}:{S_WS+3}], s70 offen offset:{1024*u} sc1')
    htok = a.vmtok()
    a.stamp(10)
    NF = a.o('nf', 2)
    def w2(j): a.emit(w_reads(j)); a('s_waitcnt lgkmcnt(0)'); wdma(j + 9)
    a(f'v_cmp_eq_u32 vcc, 0, v1\nv_mov_b32 v6, 0x7fffffff\nv_mov_b32 v7, s79\nv_cndmask_b32 v6, v6, v7, vcc\nv_mov_b32 v7, s{NONCE}')
    for j in range(W1, W1 + NF): wdma(j)
    a.wvm(htok)
    a(f'buffer_store_dword v7, v6, s[{S_WS}:{S_WS+3}], s64 offen sc1')
    a.stamp(12)
    a(f's_mul_i32 s33, s{RT}, 72\ns_mul_i32 s32, s{WAVE}, 9\ns_add_u32 s33, s33, s32\ns_add_u32 s33, s33, {F_H+WS_FLAG//128}\nv_min_u32 v8, 17, v1\nv_and_b32 v9, 1, v8\nv_mul_u32_u24 v9, 36, v9\nv_lshrrev_b32 v8, 1, v8\nv_add3_u32 v8, v8, v9, s33\nv_lshlrev_b32 v8, 7, v8')
    a(f's_mul_i32 s98, s{RT}, {144*1024}\ns_mul_i32 s33, s{WAVE}, {18*1024}\ns_add_u32 s98, s98, s33\ns_add_u32 s98, s98, {WS_H}\ns_lshl_b32 s97, s99, 10\ns_add_u32 s97, s97, s98\ns_add_u32 s98, s98, {18*1024}')
    a.pre3()
    PFS = a.o('pfs', 12)
    if PFS:
        a(f's_mul_i32 s32, s{JJ}, 43\ns_lshr_b32 s32, s32, 7\ns_mul_i32 s33, s32, 3\ns_sub_u32 s33, s{JJ}, s33\ns_mul_i32 s33, s33, 384\nv_add_u32 v4, s33, v0\nv_and_b32 v5, 127, v0\nv_add_u32 v5, 256, v5\nv_add_u32 v5, s33, v5')
        a(f's_lshl_b32 s33, s{XCD}, 2\ns_sub_u32 s33, s33, 12\ns_lshr_b32 s65, s32, 1\ns_add_u32 s65, s65, s33\ns_cmp_lt_u32 s65, 18\ns_cselect_b32 s{S_B+2}, {1152*2304}, 0')
        a(f's_bitcmp0_b32 s32, 0\ns_cselect_b32 s{S_B}, s{P_WQC}, s{P_WOC}\ns_cselect_b32 s{S_B+1}, s{P_WQC+1}, s{P_WOC+1}\ns_cselect_b32 s33, 1, 18\ns_cselect_b32 s32, {64*18}, 1\ns_mul_i32 s65, s65, s32\ns_lshl_b32 s65, s65, 7\ns_lshl_b32 s33, s33, 7')
        a(f's_and_b32 s65, s65, 0x3fffff\nv_mul_lo_u32 v4, v4, s33\nv_mul_lo_u32 v5, v5, s33')
    for j in range(W1 + NF, 9): wdma(j)
    for j in range(9): w2(j)
    a.stamp(9)
    a.poll_flags(8, 9)
    a.stamp(11)
    htk = {}
    def hld(j, tbs=(0, 1)):
        for tb in tbs: a(f'buffer_load_dwordx4 {vr(X(j,tb),4)}, v{28+tb}, s[{S_WS}:{S_WS+3}], s97 offen sc1')
        if 1 in tbs: a(f's_add_u32 s97, s97, 1024\ns_cmp_ge_u32 s97, s98\ns_cselect_b32 s33, {18*1024}, 0\ns_sub_u32 s97, s97, s33')
        htk[j] = a.vmtok()
    DH = a.o('dh', 6)
    for j in range(DH): hld(j)
    for j in range(18):
        a.wvm(htk[j])
        if j in (9, 10): a('s_waitcnt lgkmcnt(0)')
        mf = [f'v_mfma_f32_32x32x16_bf16 {ACC(cb,tb)}, {WF(j,cb)}, {vr(X(j,tb),4)}, {ACC(cb,tb) if j else 0}' for cb in range(4) for tb in range(2)]
        fills = [[] for _ in range(8)]
        if 1 <= j <= 9:
            for i, it in enumerate(w_reads(j + 8)[1:]): fills[i // 2].append(it)
        if j + DH < 18:
            for tb in range(2): fills[a.o('dpos', (4, 6))[tb]].append(lambda j=j, tb=tb: hld(j + DH, (tb,)))
        if 0 <= j - a.o('wo0', 13) < 3: fills[1].append(lambda j=j: a.wo(j - a.o('wo0', 13)))
        if PFS and j == PFS: fills[7] += [f'buffer_load_dword v6, v{4+i}, s[{S_B}:{S_B+3}], s65 offen' for i in range(2)]
        for i in range(8):
            a(mf[i]); a.emit(fills[i])
    a.stamp(6)
    a(f'v_lshlrev_b32 v10, 4, v1\nv_add_u32 v11, s{RB}, v10')
    for cb in range(3):
        for tb in range(2):
            for q in range(4): a(f'ds_write_b128 v11, {ar((cb*2+tb)*16+4*q,4)} offset:{cb*8192+tb*4096+q*1024}')
    for cb in range(3):
        a(f's_add_u32 s33, s{WAVE}, {3-cb}\ns_and_b32 s33, s33, 3\ns_mul_i32 s33, s33, {RING}\nv_add_u32 v{12+cb}, s33, v10')
    a('v_bfe_u32 v16, v1, 4, 1\nv_mul_u32_u24 v16, 36864, v16\nv_and_b32 v17, 15, v1\nv_lshl_add_u32 v16, v17, 4, v16\nv_lshrrev_b32 v17, 5, v1\nv_lshl_add_u32 v16, v17, 8, v16')
    a(f's_mul_i32 s33, s{CT}, 57\ns_lshr_b32 s33, s33, 9\ns_mul_i32 s70, s33, 9\ns_sub_u32 s70, s{CT}, s70\ns_lshl_b32 s70, s70, 2\ns_add_u32 s70, s70, s{WAVE}')
    a(f's_mul_i32 s71, s{RT}, 144\ns_add_u32 s70, s70, s71\ns_lshl_b32 s70, s70, 10\ns_mul_i32 s33, s33, 0x120000\ns_add_u32 s70, s70, s33\ns_add_u32 s70, s70, {WS_QKV}\ns_add_u32 s71, s70, 73728')
    a.prep4a()
    a('s_waitcnt lgkmcnt(0)\ns_barrier')
    for tb in range(2):
        toks = []
        for cb in range(3):
            for q in range(4): a(f'ds_read_b128 {vr(64+tb*48+cb*16+4*q,4)}, v{12+cb} offset:{cb*8192+tb*4096+q*1024}')
            toks.append(a.lgtok())
        if tb == 0: t0 = toks
        else: t1 = toks
        if tb == 0:
            for cb in range(3):
                a.wlg(t0[cb])
                for i in range(0, 16, 2): a(f'v_pk_add_f32 {vr(OWN+i,2)}, {vr(OWN+i,2)}, {vr(64+cb*16+i,2)}')
    def pack(tb):
        R = OWN + 16 * tb; P = 160 + 8 * tb
        for hh in range(2):
            for i, rr in enumerate((4 * hh, 4 * hh + 2, 8 + 4 * hh, 10 + 4 * hh)): a(f'v_cvt_pk_bf16_f32 v{P+4*hh+i}, v{R+rr}, v{R+rr+1}')
            a(f'buffer_store_dwordx4 {vr(P+4*hh,4)}, v16, s[{S_WS}:{S_WS+3}], s{70+tb} offen offset:{512*hh} sc1')
    pack(0)
    for cb in range(3):
        a.wlg(t1[cb])
        for i in range(0, 16, 2): a(f'v_pk_add_f32 {vr(OWN+16+i,2)}, {vr(OWN+16+i,2)}, {vr(112+cb*16+i,2)}')
    pack(1)
    a.stamp(7)
    WE3 = a.o('we3', 0)
    if WE3:
        a(f's_barrier\ns_cmp_ge_u32 s{JJ}, 18\ns_cbranch_scc1 L_nw')
        for q in range(3, 3 + WE3): a.wo(q)
        a(f's_waitcnt vmcnt({4*WE3})\ns_branch L_nw2\nL_nw:\ns_waitcnt vmcnt(0)\nL_nw2:\ns_barrier')
    else: a('s_waitcnt vmcnt(0)\ns_barrier')
    a(f's_lshl_b32 s32, s{TT}, 7\ns_add_u32 s32, s32, {WS_FLAG}')
    a(f'v_cmp_eq_u32 vcc, 0, v0\nv_mov_b32 v10, 0x7fffffff\nv_cndmask_b32 v10, v10, 0, vcc\nv_mov_b32 v11, s{NONCE}')
    a(f'buffer_store_dword v11, v10, s[{S_WS}:{S_WS+3}], s32 offen sc1')
    a.stamp(8)
    if a.prof and a.o('pa', 0): a('s_memtime s[34:35]\ns_waitcnt lgkmcnt(0)\ns_sub_u32 s94, s34, s94')

def build(prof=False, opt=None, phases=None):
    a = G(prof, opt)
    a.pre3 = lambda: phases['pre3'](a)
    a.wo = lambda q: phases['wo'](a, q)
    a.prep4a = lambda: phases['prep4a'](a)
    prologue(a)
    a(f's_cmp_lt_u32 s{XCD}, 3\ns_cselect_b32 s33, 32, 24\ns_cmp_ge_u32 s{JJ}, s33\ns_cbranch_scc1 L_side')
    phaseA(a)
    if a.o('xa', 0): a('s_branch L_fin')
    if phases: phases['main'](a)
    a('s_branch L_fin\nL_side:')
    a.vm = a.gtok; a.lg = 0
    if a.o('xs', 0): a('s_branch L_fin')
    if phases: phases['side'](a)
    a('L_fin:'); a.flush_prof(); a('L_end:\ns_endpgm')
    hdr = open('standalone__pixart__diffusion.s.ref').read().split('; Override launch')[0]
    hdr += f'; @launch grid=(256,1,1) block=(256,1,1) lds=163840\n.amdgcn_target "amdgcn-amd-amdhsa--gfx950"\n.text\n.globl {NAME}\n.p2align 8\n.type {NAME},@function\n{NAME}:\n'
    kd = f'''.section .rodata,"a"
.p2align 6
.amdhsa_kernel {NAME}
  .amdhsa_next_free_vgpr 512
  .amdhsa_next_free_sgpr 102
  .amdhsa_accum_offset 256
  .amdhsa_group_segment_fixed_size 0
  .amdhsa_kernarg_size 96
  .amdhsa_user_sgpr_count 2
  .amdhsa_user_sgpr_kernarg_segment_ptr 1
  .amdhsa_system_sgpr_workgroup_id_x 1
  .amdhsa_float_denorm_mode_32 3
.end_amdhsa_kernel
'''
    return hdr + a.text() + kd
if __name__ == '__main__':
    open('t.s', 'w').write(build(prof=True))
```

```python
import sys; sys.path.insert(0, 'work')
from gen import *
import gen
SS = 77
LOG2E = '0x3fb8aa3b'
WSR = f's[{S_WS}:{S_WS+3}]'
def mf32(d, A, B, c): return f'v_mfma_f32_16x16x32_bf16 {d}, {A}, {B}, {c}'
def mf16(d, A, B, c): return f'v_mfma_f32_16x16x16_bf16 {d}, {A}, {B}, {c}'
def flag2(a, sidx, vt, cnt=0):
    a(f's_waitcnt vmcnt({cnt})\ns_barrier')
    a(f's_lshl_b32 s32, s{sidx}, 7\ns_add_u32 s32, s32, {WS_FLAG}')
    a(f'v_cmp_eq_u32 vcc, 0, v0\nv_mov_b32 v{vt}, 0x7fffffff\nv_cndmask_b32 v{vt}, v{vt}, 0, vcc\nv_mov_b32 v{vt+1}, s{NONCE}')
    a(f'buffer_store_dword v{vt+1}, v{vt}, {WSR}, s32 offen sc1')
def rtile_dma_addr(a, d, t0, t1):
    a(f'v_lshrrev_b32 v{t0}, 3, v1\nv_mul_u32_u24 v{t0}, 2304, v{t0}\nv_lshrrev_b32 v{t1}, 4, v1\nv_and_b32 v{d+2}, 7, v1\nv_xor_b32 v{d}, v{d+2}, v{t1}\nv_xor_b32 v{d+1}, 4, v{d}')
    a(f'v_lshl_add_u32 v{d}, v{d}, 4, v{t0}\nv_lshl_add_u32 v{d+1}, v{d+1}, 4, v{t0}\nv_add_u32 v{d+1}, {8*2304-1024}, v{d+1}')
    a(f'v_add_u32 v{d+2}, {2*(8*2304-1024)}, v{d}\nv_add_u32 v{d+3}, {2*(8*2304-1024)}, v{d+1}')
def tr_addrs(a, d, sx, t0, t1, t2):
    strip_tr_base(a, t2, t0, t1)
    a(f'v_add_u32 v{t2}, s{RB}, v{t2}\nv_xor_b32 v{t1}, s{sx}, v{t1}')
    for c in range(4): a(f'v_xor_b32 v{t0}, {c}, v{t1}\nv_lshl_add_u32 v{d+c}, v{t0}, 5, v{t2}')
def rt_base(a, d, f, t):
    a(f'v_bfe_u32 v{t}, v1, 3, 1\nv_lshlrev_b32 v{d}, 10, v{t}\nv_and_b32 v{t}, 7, v1\nv_lshl_add_u32 v{d}, v{t}, 7, v{d}\nv_bfe_u32 v{t}, v1, 4, 1\nv_lshl_add_u32 v{d}, v{t}, 3, v{d}')
    a(f'v_bfe_u32 v{f}, v1, 1, 3\nv_lshrrev_b32 v{t}, 5, v1\nv_xor_b32 v{f}, v{f}, v{t}')
def reduce4(a, M, own, oth, tmp, v10=10, lo=0):
    a(f'v_lshlrev_b32 v{v10}, 4, v1\nv_add_u32 v{v10+1}, s{RB}, v{v10}')
    for sg in (1, 2, 3):
        for m in range(M): a(f'ds_write_b128 v{v10+1}, {ar(oth(sg,m),4)} offset:{((sg-1)*M+m)*1024}')
    for sg in (1, 2, 3): a(f's_xor_b32 s33, s{WAVE}, {sg}\ns_mul_i32 s33, s33, {RING}\ns_add_u32 s33, s33, {lo}\nv_add_u32 v{v10+1+sg}, s33, v{v10}')
    a('s_waitcnt lgkmcnt(0)\ns_barrier')
    toks = []
    for sg in (1, 2, 3):
        for m in range(M): a(f'ds_read_b128 {vr(tmp+((sg-1)*M+m)*4,4)}, v{v10+1+sg} offset:{((sg-1)*M+m)*1024}')
        toks.append(a.lgtok())
    for sg in (1, 2, 3):
        a.wlg(toks[sg-1])
        for i in range(0, 4 * M, 2): a(f'v_pk_add_f32 {vr(own+i,2)}, {vr(own+i,2)}, {vr(tmp+(sg-1)*M*4+i,2)}')
def l16(a, d):
    a(f'v_lshlrev_b32 v{d}, 4, v1\nv_add_u32 v{d+1}, 4096, v{d}\nv_add_u32 v{d+2}, 8192, v{d}')
def fload(a, dst, i, va, so): a(f'buffer_load_dwordx4 {dst}, v{va+(i>>2)}, {WSR}, s{so} offen offset:{(i&3)*1024} ' + a.o('fsc', 'sc1'))

def cap(a, fn):
    L, vm, lg = a.L, a.vm, a.lg; a.L = []; fn(); out = a.L; a.L, a.vm, a.lg = L, vm, lg
    items = []; cur = []
    for ln in out:
        cur.append(ln)
        if ln.startswith(('buffer_', 'ds_')): items.append('\n'.join(cur)); cur = []
    if cur: items.append('\n'.join(cur))
    return items
def weave(a, main, *fills):
    n = len(main); pos = [0] * len(fills)
    for i, m in enumerate(main):
        a(m)
        for k, f in enumerate(fills):
            tgt = (len(f) * (i + 1) + n - 1) // n
            while pos[k] < tgt: a.emit([f[pos[k]]]); pos[k] += 1
OWN = 32
def ACC5(b, kb, e):
    sg = b + 2 * (e >> 1); m = kb * 2 + (e & 1)
    return vr(OWN + 4 * m, 4) if sg == 0 else ar((sg - 1) * 40 + 4 * m, 4)
def side(a):
    a(f's_lshl_b32 s{SS}, s{XCD}, 3\ns_add_u32 s{SS}, s{SS}, s{JJ}\ns_sub_u32 s{SS}, s{SS}, 48\ns_cmp_ge_u32 s{SS}, 36\ns_cbranch_scc1 L_help')
    a.srd(S_A, P_Y, 2 * 177408); a.srd(S_B, P_WKV, 1152 * 4608)
    strip_dma_addr(a, 4, 4608, 16, 17)
    rtile_dma_addr(a, 8, 16, 17)
    a('v_lshrrev_b32 v16, 3, v1\nv_min_u32 v17, 4, v16\nv_sub_u32 v16, v16, v17\nv_mul_u32_u24 v16, 2304, v16\nv_sub_u32 v12, v9, v16')
    a(f's_lshl_b32 s64, s{SS}, 7\ns_mul_i32 s60, s{WAVE}, {4*64*4608}\ns_add_u32 s60, s60, s64\ns_lshr_b32 s33, s{WAVE}, 1\ns_add_u32 s33, s33, 16\ns_mul_i32 s61, s33, {64*4608}\ns_add_u32 s61, s61, s64\ns_lshl_b32 s64, s33, 7')
    a(f's_mul_i32 s66, s{WAVE}, 40960')
    snt = a.o('snt', 'nt'); wt = {}
    for c in range(5):
        if c < 4: a(f's_add_u32 s33, s{JJ}, {c}\ns_and_b32 s33, s33, {3 if a.o("yrot", 1) else 0}\n' + ('' if a.o('yrot', 1) else f's_add_u32 s33, s33, {c}\n') + f's_lshl_b32 s{96+c}, s33, 7\ns_mul_i32 s33, s33, {64*4608}\ns_add_u32 s79, s33, s60')
        for h in range(2): a.dma4(4, 4, S_B, 79 if c < 4 else 61, h * 32 * 4608, c * 8192 + h * 4096, flags=snt, ldsbase=66)
        wt[c] = a.vmtok()
        if c == a.o('ytp', 0) and a.o('yt', 0):
            a(f's_and_b32 s33, s{JJ}, 3\ns_mul_i32 s33, s33, {768*128}\nv_lshlrev_b32 v13, 7, v0')
            for i in range(3): a(f'buffer_load_dword v31, v13, s[{S_A}:{S_A+3}], s33 offen\ns_add_u32 s33, s33, 32768')
    a(f's_and_b32 s33, s{WAVE}, 1\ns_mul_i32 s62, s33, 177408\ns_sub_u32 s63, 177408, s62\ns_add_u32 s64, s64, s62\ns_lshl_b32 s33, s{WAVE}, 9\ns_add_u32 s62, s62, s33\ns_add_u32 s63, s63, s33\ns_and_b32 s65, s{WAVE}, 2')
    a(f's_cmp_ge_u32 s{SS}, 18\ns_cselect_b32 s69, 18, 0\ns_cselect_b32 s70, 0x5A000, 0\ns_sub_u32 s69, s{SS}, s69')
    def wtouch():
        a(f's_cmp_eq_u32 s70, 0\ns_cselect_b32 s{S_C}, s{P_WQC}, s{P_WOC}\ns_cselect_b32 s{S_C+1}, s{P_WQC+1}, s{P_WOC+1}\ns_mov_b32 s{S_C+2}, {1152*2304}\ns_mov_b32 s{S_C+3}, 0x20000\ns_cselect_b32 s33, 1, 18\ns_cselect_b32 s32, {64*18}, 1\ns_mul_i32 s32, s32, s69\ns_lshl_b32 s32, s32, 7\ns_lshl_b32 s33, s33, 7')
        for i in range(5): a(f'v_add_u32 v13, {256*i}, v0\n' + ('v_min_u32 v13, 1151, v13\n' if i == 4 else '') + f'v_mul_lo_u32 v13, v13, s33\nbuffer_load_dword v31, v13, s[{S_C}:{S_C+3}], s32 offen')
    if a.o('tq', 0) == 1: wtouch()
    yt = {}
    def yd(t):
        sb = 64 if t == 8 else 79; o = 0
        if t < 8: a(f's_add_u32 s79, s{62+(t&1)}, s{96+(t>>1)}')
        L = 10240 * (t % 4)
        a.dma4(8, 4, S_A, sb, o, L, flags='', ldsbase=66); a.dma4(8, 4, S_A, sb, o + 32 * 2304, L + 4096, flags='', ldsbase=66)
        a.dma4(8, 1, S_A, sb, o + 64 * 2304, L + 8192, flags='', ldsbase=66); a(f'buffer_load_dwordx4 v12, s[{S_A}:{S_A+3}], s32 offen offset:1024 lds')
        yt[t] = a.vmtok()
        if t == 8 and a.o('tq', 0) == 2: wtouch()
    a(f's_mov_b32 s67, s{RB}\ns_mov_b32 s{RB}, s66')
    tr_addrs(a, 20, 65, 16, 17, 18)
    a(f's_mov_b32 s{RB}, s67')
    rt_base(a, 18, 17, 16)
    a(f'v_add_u32 v18, s66, v18')
    for q in range(4): a(f'v_xor_b32 v16, {2*q}, v17\nv_lshl_add_u32 v{24+q}, v16, 4, v18')
    sels(a)
    def WF(c, h, e, n=4, o=0):
        i = (c * 2 + h) * 4 + e
        return ar(120 + 4 * i + o, n) if i < 34 else vr(232 + 4 * (i - 34) + o, n)
    YF = lambda t, h, kb: 104 + 40 * (t & 1) + (h * 5 + kb) * 4
    for c in range(5):
        a.wvm(wt[c])
        if c == 0: a(f'v_readfirstlane_b32 s{NONCE}, v3\ns_mul_i32 s{NONCE}, s{NONCE}, 0x9E3779B1\ns_add_u32 s{NONCE}, s{NONCE}, 0x7F4A7C15')
        for h in range(2):
            for e in range(4): a(f'ds_read_b64_tr_b16 {WF(c,h,e,2)}, v{20+e} offset:{c*8192+h*4096}\nds_read_b64_tr_b16 {WF(c,h,e,2,2)}, v{20+e} offset:{c*8192+h*4096+2048}')
        if c >= 1: a('s_waitcnt lgkmcnt(0)'); yd(c - 1)
        if c in (1, 4): a.stamp(9 if c == 1 else 10)
    def mmy(t):
        c, b = t >> 1, t & 1
        return [mf32(ACC5(b,kb,e), WF(c,h,e), vr(YF(t,h,kb),4), ACC5(b,kb,e) if (t > 1 or h) else 0) for h in range(2) for kb in range(5) for e in range(4)]
    yr = lambda t: [f'ds_read_b64 {vr(YF(t,h,kb)+2*j2,2)}, v{24+2*h+j2} offset:{10240*(t%4)+2048*kb}' for h in range(2) for kb in range(5) for j2 in range(2)]
    a.wvm(yt[0]); a.emit(yr(0)); a('s_waitcnt lgkmcnt(0)')
    for t in range(9):
        f1 = []
        if 4 <= t + 4 < 9: f1 = cap(a, lambda: yd(t + 4)) + [lambda t=t: yt.__setitem__(t + 4, a.vmtok())]
        f2 = []
        if t < 8: f2 = [''] * 10 + [lambda t=t: a.wvm(yt[t + 1])] + yr(t + 1) + [''] * 3
        weave(a, mmy(t), f1, f2)
        a('s_waitcnt lgkmcnt(0)')
    a('s_barrier\ns_nop 7')
    a.stamp(1)
    reduce4(a, 10, OWN, lambda sg, m: (sg - 1) * 40 + 4 * m, 104)
    a(f's_and_b32 s33, s{WAVE}, 1\ns_mul_i32 s71, s33, 180\ns_lshl_b32 s33, s69, 1\ns_add_u32 s71, s71, s33\ns_lshr_b32 s33, s{WAVE}, 1\ns_add_u32 s71, s71, s33\ns_lshl_b32 s71, s71, 10\ns_add_u32 s71, s71, s70\ns_add_u32 s71, s71, {WS_KVC}')
    for kb in range(5):
        R = OWN + 8 * kb; P = 232 + 4 * (kb & 1)
        for i in range(4): a(f'v_cvt_pk_bf16_f32 v{P+i}, v{R+2*i}, v{R+2*i+1}')
        a(f'buffer_store_dwordx4 {vr(P,4)}, v10, {WSR}, s71 offen sc1\ns_add_u32 s71, s71, 36864')
    a('s_barrier')
    a.stamp(2)
    WQ = lambda i, e: (ar(120 + 4 * (i * 4 + e), 4) if i * 4 + e < 34 else vr(232 + 4 * (i * 4 + e - 34), 4))
    WQ2 = lambda i, e, h: (ar(120 + 4 * (i * 4 + e) + 2 * h, 2) if i * 4 + e < 34 else vr(232 + 4 * (i * 4 + e - 34) + 2 * h, 2))
    FR = lambda i, kb: (vr(112 + (i * 5 + kb) * 4, 4) if i < 6 else ar(60 + ((i - 6) * 5 + kb) * 4, 4))
    AQ = lambda kb, e: (vr(OWN + 4 * kb, 4) if e == 0 else ar((e - 1) * 20 + 4 * kb, 4))
    qnt = a.o('qnt', '')
    a(f's_lshr_b32 s68, s{SS}, 1\ns_and_b32 s67, s{SS}, 1')
    a.srd(S_A, P_WQC, 1152 * 2304)
    rtile_dma_addr(a, 4, 16, 17)
    a(f's_mul_i32 s60, s{WAVE}, 9\ns_mul_i32 s61, s68, {64*2304}')
    QE = a.o('qe', 2)
    for q in range(9):
        a(f's_add_u32 s62, s60, {q}\ns_and_b32 s63, s62, 1\ns_mul_i32 s63, s63, {32*2304}\ns_lshr_b32 s62, s62, 1\ns_lshl_b32 s62, s62, 7\ns_add_u32 s62, s62, s63\ns_add_u32 s62, s62, s61')
        a.dma4(4, 4, S_A, 62, 0, q * 4096, flags=qnt)
        if q == QE - 1:
            a(f's_add_u32 s78, s{SS}, {F_KVC}')
            flag2(a, 78, 16, 4 * QE)
    l16(a, 28)
    a(f's_mul_i32 s60, s67, 184320\ns_mul_i32 s33, s{WAVE}, 9216\ns_add_u32 s33, s33, {WS_KVC}\ns_add_u32 s60, s60, s33')
    for kb in range(1, 5): a(f's_add_u32 s{60+kb}, s60, {kb*36864}')
    a(f'v_min_u32 v16, 17, v1\nv_lshlrev_b32 v16, 7, v16\nv_add_u32 v16, {WS_FLAG+128*F_KVC}, v16\nv_add_u32 v15, {18*128}, v16')
    rt_base(a, 18, 17, 19)
    for p in range(2):
        a(f's_mul_i32 s33, s{WAVE}, 9\ns_add_u32 s33, s33, {p}\ns_and_b32 s78, s33, 1\ns_lshl_b32 s78, s78, 2\ns_lshr_b32 s33, s33, 1\ns_lshl_b32 s33, s33, 13\ns_lshl_b32 s79, s{WAVE}, 11\ns_add_u32 s33, s33, s79')
        for j2 in range(2):
            r = 52 + 8 * p + 4 * j2
            a(f'v_xor_b32 v19, s78, v17\nv_xor_b32 v19, {2*j2}, v19\nv_lshl_add_u32 v{r}, v19, 4, v18\nv_add_u32 v{r}, s33, v{r}')
            for e in range(1, 4): a(f'v_xor_b32 v{r+e}, {2048*e}, v{r}')
    a(f's_mul_i32 s71, s67, 72\ns_lshl_b32 s33, s68, 2\ns_add_u32 s71, s71, s33\ns_add_u32 s71, s71, s{WAVE}\ns_mul_i32 s71, s71, 2560\ns_add_u32 s71, s71, {WS_KQ}')
    a.srd(S_B, P_WOC, 1152 * 2304)
    strip_dma_addr(a, 4, 2304, 19, 31)
    a(f's_mul_i32 s65, s{WAVE}, {288*2304}\ns_lshl_b32 s33, s68, 7\ns_add_u32 s65, s65, s33')
    tr_addrs(a, 20, WAVE, 17, 18, 19)
    a(f'v_lshlrev_b32 v9, 3, v1\ns_and_b32 s66, s{JJ}, {6 if a.o("krot", 1) else 0}')
    def r9(q, d): a(f's_add_u32 s{d}, s66, {q}\ns_cmp_ge_u32 s{d}, 9\ns_cselect_b32 s33, 9, 0\ns_sub_u32 s{d}, s{d}, s33')
    for i in range(9): r9(i, 79); a(f's_lshl_b32 s79, s79, 10\nv_add_u32 v{240+i}, s79, v28')
    def wod(q): r9(q, 79); a(f's_mul_i32 s79, s79, {32*2304}\ns_add_u32 s79, s79, s65'); a.dma4(4, 4, S_B, 79, 0, q * 4096, flags=qnt); wt[q] = a.vmtok()
    tok = {}
    def ldall(r=range(9)):
        for i in r:
            for kb in range(5): fload(a, FR(i,kb), 0, 240 + i, 60 + kb)
            tok[i] = a.vmtok()
    a.stamp(3); a.poll_flags(16, 17); a.stamp(4)
    def mfs(kq, i): return [mf32(AQ(kb,e), *((WQ(i,e), FR(i,kb)) if kq else (FR(i,kb), WQ(i,e))), AQ(kb,e) if i else 0) for kb in range(5) for e in range(4)]
    def ldc(i): return cap(a, lambda: ldall([i])) + [lambda: tok.__setitem__(i, a.vmtok())]
    def wodc(q): return cap(a, lambda: wod(q)) + [lambda: wt.__setitem__(q, a.vmtok())]
    KD = a.o('kd', 4)
    def mm(kq):
        for i in range(9):
            a.wvm(tok[i])
            f = ldc(i + KD) if i + KD < 9 else []
            if i + KD == 9: f += [f'buffer_load_dword v17, v15, {WSR}, 0 offen sc1', lambda: tok.__setitem__('vc', a.vmtok())]
            if i + KD >= 9: f += wodc(i + KD - 9)
            weave(a, mfs(kq, i), f)
        for q in range(KD, 5): wod(q)
    def fin(fl):
        a(f's_add_u32 s{RB}, s{RB}, 20480')
        reduce4(a, 5, OWN, lambda sg, m: (sg - 1) * 20 + 4 * m, 52, lo=20480)
        a(f's_sub_u32 s{RB}, s{RB}, 20480')
        P = 96
        for kb in range(5):
            for i in range(2): a(f'v_cvt_pk_bf16_f32 v{P+2*kb+i}, v{OWN+4*kb+2*i}, v{OWN+4*kb+2*i+1}')
        a(f'buffer_store_dwordx4 {vr(P,4)}, v10, {WSR}, s71 offen sc1\nbuffer_store_dwordx4 {vr(P+4,4)}, v10, {WSR}, s71 offen offset:1024 sc1\nbuffer_store_dwordx2 {vr(P+8,2)}, v9, {WSR}, s71 offen offset:2048 sc1')
        a(f's_add_u32 s78, s{SS}, {fl}')
    ldall(range(KD))
    a('s_barrier')
    for r in range(4):
        if r < 3: a(f's_cmp_lg_u32 s66, {2*r}\ns_cbranch_scc1 L_kr{r}')
        for i0 in range(9):
            i = (i0 + 2 * r) % 9
            for e in range(4):
                for j2 in range(2): a(f'ds_read_b64 {WQ2(i0,e,j2)}, v{52+8*(i&1)+4*j2+e} offset:{(i>>1)*8192}')
        if r < 3: a(f's_branch L_kre\nL_kr{r}:')
    a('L_kre:\ns_waitcnt lgkmcnt(0)\ns_barrier')
    wt = {}
    mm(True)
    a.stamp(5)
    a.wvm(tok['vc'])
    a(f'v_cmp_ne_u32 vcc, s{NONCE}, v17\ns_nop 1\ns_cbranch_vccz L_vcok')
    n0 = a.vm
    a.poll_flags(15, 17)
    a.vm = n0
    a('L_vcok:')
    for kb in range(5): a(f's_add_u32 s{60+kb}, s{60+kb}, 0x5A000')
    NE = a.o('ne', 2)
    trr = lambda i: [f'ds_read_b64_tr_b16 {WQ2(i,e,j2)}, v{20+e} offset:{i*4096+j2*2048}' for e in range(4) for j2 in range(2)]
    fin(F_KQ)
    n1 = a.vm
    ldall(range(NE))
    a.wvm(wt[4])
    for i in range(5): a.emit(trr(i))
    flag2(a, 78, 16, a.vm - n1)
    a.stamp(6)
    ldall(range(NE, 3))
    a('s_add_u32 s71, s71, 0x5A000\ns_waitcnt lgkmcnt(0)')
    for i in range(9):
        a.wvm(tok[i])
        if i >= 5: a('s_waitcnt lgkmcnt(0)')
        f = (wodc(5 + 2 * i) + wodc(6 + 2 * i) if i < 2 else []) + (ldc(i + 3) if i + 3 < 9 else [])
        weave(a, mfs(False, i), f, [lambda i=i: a.wvm(wt[i + 1])] + trr(i + 1) if 4 <= i < 8 else [])
    a.stamp(13)
    a('s_barrier')
    fin(F_VO)
    flag2(a, 78, 16)
    a.stamp(14)
    a('s_branch L_fin\nL_help:')
    a.vm = a.gtok
    a(f's_cmp_lg_u32 s{SS}, 36\ns_cbranch_scc1 L_fin')
    get_nonce(a)
    a(f'v_mov_b32 v16, {WS_FLAG+128*F_VWO}'); a.poll_flags(16, 17)
    a(f'v_lshlrev_b32 v16, 7, v0\nv_add_u32 v16, {WS_FLAG}, v16'); a.poll_flags(16, 17)
    a(f'v_add_u32 v16, 256, v0\nv_min_u32 v16, 511, v16\nv_lshlrev_b32 v16, 7, v16\nv_add_u32 v16, {WS_FLAG}, v16'); a.poll_flags(16, 17)
    a(f'v_min_u32 v16, 19, v1\nv_lshlrev_b32 v16, 7, v16\nv_add_u32 v16, {WS_FLAG+512*128}, v16'); a.poll_flags(16, 17)
    a(f's_mov_b32 s78, {(WS_GEN-WS_FLAG)//128}')
    flag2(a, 78, 16)


def pre3(a):
    a(f's_lshr_b32 s60, s{XCD}, 1\ns_lshl_b32 s60, s60, 1\ns_and_b32 s33, s{JJ}, 1\ns_add_u32 s60, s60, s33\ns_and_b32 s61, s{XCD}, 1\ns_mul_i32 s61, s61, 9\ns_lshr_b32 s63, s{JJ}, 1\ns_min_u32 s63, s63, 8\ns_add_u32 s61, s61, s63')
    if not a.o('rot9', 1): a('s_mov_b32 s63, 0')
    a.srd(S_A, P_WO, 1152 * 2304)
    strip_dma_addr(a, 20, 2304, 30, 31)
    a(f's_mul_i32 s62, s{WAVE}, {288*2304}\ns_lshl_b32 s33, s61, 7\ns_add_u32 s62, s62, s33')
def rot9(a, q, d): a(f's_add_u32 s{d}, s63, {q}\ns_cmp_ge_u32 s{d}, 9\ns_cselect_b32 s33, 9, 0\ns_sub_u32 s{d}, s{d}, s33')
def wo(a, q, guard=False):
    L = a.lab('wo')
    if guard: a(f's_cmp_ge_u32 s{JJ}, 18\ns_cbranch_scc1 {L}')
    rot9(a, q, 64); a(f's_mul_i32 s64, s64, {32*2304}\ns_add_u32 s64, s64, s62')
    a.dma4(20, 4, S_A, 64, 0, ((6 + q) % 9) * 4096, flags=a.o('ont', ''))
    if guard: a(f'{L}:')
def main(a):
    a.late = True
    a(f's_cmp_ge_u32 s{JJ}, 26\ns_cbranch_scc1 L_idle\ns_cmp_ge_u32 s{JJ}, 18\ns_cbranch_scc1 L_s3s')
    WF = lambda i, c: 96 + 16 * i + 4 * c
    VF = lambda i, kb: vr(64 + (i * 4 + kb) * 4, 4)
    AC = lambda kb, c: (vr(OWN + 4 * kb, 4) if c == 0 else ar((c - 1) * 16 + 4 * kb, 4))
    for q in range(3 + a.o('we3', 0), 9): wo(a, q, False)
    tr_addrs(a, 249, WAVE, 17, 16, 31)
    trw = lambda i: [f'ds_read_b64_tr_b16 {ar(WF(i,c)+2*j2,2)}, v{249+c} offset:{(6+i)%9*4096+j2*2048}' for c in range(4) for j2 in range(2)]
    for i in range(3): a.emit(trw(i))
    prep4(a, 25)
    for i in range(9): rot9(a, i, 64); a(f's_lshl_b32 s64, s64, 10\nv_add_u32 v{240+i}, s64, v28')
    a(f's_mul_i32 s64, s60, {4*36864}\ns_mul_i32 s33, s{WAVE}, 9216\ns_add_u32 s64, s64, s33\ns_add_u32 s64, s64, {WS_QKV+2*0x120000}')
    for kb in range(1, 4): a(f's_add_u32 s{64+kb}, s64, {kb*36864}')
    a(f'v_min_u32 v16, 8, v1\nv_lshlrev_b32 v16, 3, v16\nv_add_u32 v16, s60, v16\nv_lshlrev_b32 v16, 7, v16\nv_add_u32 v16, {WS_FLAG+144*128}, v16')
    a(f's_lshr_b32 s33, s60, 2\ns_mul_i32 s70, s33, 72\ns_lshl_b32 s33, s61, 2\ns_add_u32 s70, s70, s33\ns_add_u32 s70, s70, s{WAVE}\ns_lshl_b32 s70, s70, 3\ns_and_b32 s33, s60, 3\ns_lshl_b32 s33, s33, 1\ns_add_u32 s70, s70, s33\ns_lshl_b32 s70, s70, 10\ns_add_u32 s70, s70, {WS_VWO}')
    a(f's_mul_i32 s71, s60, 18\ns_add_u32 s71, s71, s61\ns_add_u32 s71, s71, {F_VWO}')
    for i in range(3, 9): a(f's_waitcnt vmcnt({32-4*i})'); a.emit(trw(i))
    a.stamp(9)
    a.poll_flags(16, 17)
    a.stamp(10)
    tok = {}
    def vld(i):
        for kb in range(4): fload(a, VF(i,kb), 0, 240 + i, 64 + kb)
        tok[i] = a.vmtok()
    VD = a.o('vd', 4)
    for i in range(VD): vld(i)
    a('s_waitcnt lgkmcnt(0)')
    for i in range(9):
        a.wvm(tok[i])
        weave(a, [mf32(AC(kb,c), VF(i,kb), ar(WF(i,c),4), AC(kb,c) if i else 0) for kb in range(4) for c in range(4)],
              cap(a, lambda: vld(i + VD)) + [lambda i=i: tok.__setitem__(i + VD, a.vmtok())] if i + VD < 9 else [])
    reduce4(a, 4, OWN, lambda sg, m: (sg - 1) * 16 + 4 * m, 64, v10=249)
    for m in range(2):
        for i in range(4): a(f'v_cvt_pk_bf16_f32 v{120+4*m+i}, v{OWN+8*m+2*i}, v{OWN+8*m+2*i+1}')
        a(f'buffer_store_dwordx4 {vr(120+4*m,4)}, v249, {WSR}, s70 offen offset:{1024*m} sc1')
    a('s_branch L_s3e\nL_s3s:')
    a(f's_cmp_ge_u32 s{JJ}, 24\ns_cbranch_scc1 L_nop4')
    prep4(a, 1)
    a('L_nop4:')
    a(f's_sub_u32 s33, s{JJ}, 18\ns_and_b32 s60, s33, 1\ns_lshr_b32 s61, s33, 1\ns_and_b32 s33, s{XCD}, 6\ns_add_u32 s60, s60, s33\ns_and_b32 s33, s{XCD}, 1\ns_lshl_b32 s33, s33, 2\ns_add_u32 s61, s61, s33')
    a(f's_and_b32 s33, s{XCD}, 4\ns_lshr_b32 s62, s61, 1\ns_add_u32 s62, s62, s33')
    l16(a, 28)
    a(f's_mul_i32 s63, s{WAVE}, 9216\ns_add_u32 s63, s63, {WS_QKV}')
    for c in range(4): a(f's_xor_b32 s33, s{WAVE}, {c}\ns_lshl_b32 s32, s60, 2\ns_add_u32 s33, s33, s32\ns_mul_i32 s33, s33, 36864\ns_add_u32 s{64+c}, s33, s63')
    a(f's_and_b32 s33, s{XCD}, 4\ns_lshl_b32 s33, s33, 1\ns_add_u32 s33, s33, s61\ns_mul_i32 s33, s33, {2*36864}\ns_add_u32 s68, s33, s63\ns_add_u32 s68, s68, 0x120000\ns_add_u32 s69, s68, 36864')
    a(f'v_min_u32 v16, 17, v1\nv_cmp_gt_u32 vcc, 9, v16\nv_mov_b32 v17, s62\nv_mov_b32 v31, s60\nv_cndmask_b32 v17, v17, v31, vcc\nv_lshl_add_u32 v16, v16, 3, v17\nv_lshlrev_b32 v16, 7, v16\nv_add_u32 v16, {WS_FLAG}, v16')
    a(f's_lshl_b32 s70, s60, 2\ns_add_u32 s70, s70, s{WAVE}\ns_lshl_b32 s70, s70, 3\ns_add_u32 s70, s70, s61\ns_lshl_b32 s70, s70, 10\ns_add_u32 s70, s70, {WS_S}')
    a(f's_lshl_b32 s71, s60, 3\ns_add_u32 s71, s71, s61\ns_add_u32 s71, s71, {F_S}\ns_mov_b32 s78, 0x3cf15bef')
    a.stamp(9)
    a.poll_flags(16, 17)
    a.stamp(10)
    KF = lambda i, m: ar(96 + (i * 2 + m) * 4, 4)
    AS = lambda m, c: (vr(OWN + 4 * m, 4) if c == 0 else ar((c - 1) * 8 + 4 * m, 4))
    def sld(i):
        for m in range(2): fload(a, KF(i,m), i, 28, 68 + m)
        for c in range(4): fload(a, VF(i,c), i, 28, 64 + c)
        tok[i] = a.vmtok()
    SD = a.o('sd', 5)
    for i in range(SD): sld(i)
    for i in range(9):
        a.wvm(tok[i])
        weave(a, [mf32(AS(m,c), KF(i,m), VF(i,c), AS(m,c) if i else 0) for m in range(2) for c in range(4)],
              cap(a, lambda: sld(i + SD)) + [lambda i=i: tok.__setitem__(i + SD, a.vmtok())] if i + SD < 9 else [])
    reduce4(a, 2, OWN, lambda sg, m: (sg - 1) * 8 + 4 * m, 64, v10=249)
    for i in range(4): a(f'v_cvt_pk_bf16_f32 v{120+i}, v{OWN+2*i}, v{OWN+2*i+1}')
    for i in range(4): a(f'v_lshlrev_b32 v{OWN+2*i}, 16, v{120+i}\nv_and_b32 v{OWN+2*i+1}, s{MASKHI}, v{120+i}')
    for i in range(8): a(f'v_mul_f32 v{OWN+i}, s78, v{OWN+i}')
    for i in range(4): a(f'v_cvt_pk_bf16_f32 v{120+i}, v{OWN+2*i}, v{OWN+2*i+1}')
    a(f'buffer_store_dwordx4 {vr(120,4)}, v249, {WSR}, s70 offen sc1')
    a('L_s3e:')
    a.stamp(11)
    stage4(a)
    a('s_branch L_fin\nL_idle:')
    a(f's_mul_i32 s33, s{XCD}, 6\ns_add_u32 s33, s33, s{JJ}\ns_sub_u32 s33, s33, 26\ns_cmp_ge_u32 s33, 10\ns_cbranch_scc1 L_fin')
    a(f's_lshr_b32 s{XCD}, s33, 1\ns_add_u32 s{XCD}, s{XCD}, 3\ns_and_b32 s{JJ}, s33, 1\ns_add_u32 s{JJ}, s{JJ}, 24\ns_branch L_s3s')

def xg(a, op, c, t):
    a(f'v_mov_b32 v{t}, v{c}\nv_permlane32_swap_b32 v{c}, v{t}\n{op} v{c}, v{c}, v{t}\nv_mov_b32 v{t}, v{c}\nv_permlane16_swap_b32 v{c}, v{t}\n{op} v{c}, v{c}, v{t}')
def tree(a, op3, op2, dst, regs):
    regs = list(regs); first = True
    a(f'{op3} v{dst}, v{regs[0]}, v{regs[1]}, v{regs[2]}'); k = 3
    while k + 1 < len(regs): a(f'{op3} v{dst}, v{dst}, v{regs[k]}, v{regs[k+1]}'); k += 2
    if k < len(regs): a(f'{op2} v{dst}, v{dst}, v{regs[k]}')
L_P, L_ML, L_R, L_SUM = 0, 8192, 16384, 49152
def tagcheck(a, tags, T):
    a(f'v_xor_b32 v{T}, s{NONCE}, v{tags[0]}\nv_xor_b32 v{T+1}, s{NONCE}, v{tags[1]}')
    for i in range(2, len(tags), 2): a(f'v_xor_b32 v{T+2}, s{NONCE}, v{tags[i]}\nv_xor_b32 v{T+3}, s{NONCE}, v{tags[i+1]}\nv_or3_b32 v{T+(i//2&1)}, v{T+(i//2&1)}, v{T+2}, v{T+3}')
    a(f'v_or_b32 v{T}, v{T}, v{T+1}\nv_cmp_ne_u32 vcc, 0, v{T}')
def gpoll(a, loads, tags, T, pre=None):
    L = a.lab('gp'); E = a.lab('ge'); C = a.lab('gc')
    a(f's_mov_b32 s33, {SPIN}\n' + (f's_waitcnt vmcnt({pre})\ns_branch {C}\n' if pre is not None else '') + f'{L}:'); loads(); a(f's_waitcnt vmcnt(0)\n{C}:')
    tagcheck(a, tags, T)
    a(f's_sub_u32 s33, s33, 1\ns_cmp_eq_u32 s33, 0\ns_cbranch_scc1 {E}\ns_nop 1\ns_cbranch_vccnz {L}\n{E}:')
GL = [228, 229, 230, 231, 48, 49, 50, 51, 232, 233, 254, 255]
XR, X1, T4, XF = 228, 234, 240, 216
Q_X, Q_S, Q_VWO, Q_KQ, Q_VO, Q_PUB, Q_SC = 38, 39, 40, 41, 42, 43, 46
GP = lambda c, p: 176 + 16 * c + 4 * p
def gl(a):
    for p in range(4):
        a(f's_add_u32 s32, s51, {p*27648}')
        for c in range(3): a(f'buffer_load_dwordx4 {vr(GP(c,p),4)}, v5, {WSR}, s32 offen offset:{64*c} sc1')
def prep4a(a):
    a(f's_lshr_b32 s47, s{XCD}, 1\ns_lshl_b32 s47, s47, 3\ns_and_b32 s33, s{JJ}, 7\ns_add_u32 s47, s47, s33\ns_and_b32 s48, s{XCD}, 1\ns_mul_i32 s48, s48, 3\ns_lshr_b32 s33, s{JJ}, 3\ns_add_u32 s48, s48, s33\ns_lshr_b32 s49, s{XCD}, 2')
    a(f's_mul_i32 s50, s48, 12\ns_mul_i32 s33, s{WAVE}, 3\ns_add_u32 s50, s50, s33')
    a(f'v_and_b32 v6, 15, v1\nv_mul_u32_u24 v4, 2304, v6\nv_lshrrev_b32 v7, 4, v1\nv_lshl_add_u32 v4, v7, 3, v4\nv_lshlrev_b32 v5, 4, v7')
    a(f's_mul_i32 s{Q_X}, s47, {16*2304}\ns_lshl_b32 s33, s50, 5\ns_add_u32 s{Q_X}, s{Q_X}, s33')
    for c in range(3): a(f'buffer_load_dwordx2 {vr(XR+2*c,2)}, v4, s[{S_C}:{S_C+3}], s{Q_X} offen offset:{32*c}')
    a(f's_mul_i32 s51, s49, 13824\ns_lshl_b32 s33, s50, 6\ns_add_u32 s51, s51, s33\ns_add_u32 s51, s51, {576*16}')
    gl(a)
def prep4(a, cnt):
    T = T4
    a('v_lshlrev_b32 v11, 3, v1')
    a.srd(S_B, P_OUT, 512 * 2304)
    l16(a, 28)
    a(f's_lshr_b32 s33, s47, 2\ns_lshl_b32 s33, s33, 3\ns_add_u32 s33, s33, {F_S+WS_FLAG//128}\nv_add_u32 v16, s33, v1')
    a(f's_mul_i32 s52, s48, 3\ns_mul_i32 s33, s49, 72\ns_add_u32 s33, s33, s52\ns_add_u32 s33, s33, {F_VWO+WS_FLAG//128}\nv_min_u32 v17, 19, v1\nv_subrev_u32 v17, 8, v17\nv_and_b32 v18, 3, v17\nv_mul_u32_u24 v18, 18, v18\nv_lshrrev_b32 v17, 2, v17\nv_add3_u32 v17, v17, v18, s33')
    a(f'v_cmp_gt_u32 vcc, 8, v1\nv_cndmask_b32 v16, v17, v16, vcc\nv_lshlrev_b32 v23, 7, v16\ns_lshl_b32 s33, s52, 1\ns_add_u32 s33, s33, s49\ns_add_u32 s33, s33, {F_KQ+WS_FLAG//128}\nv_min_u32 v17, 2, v1\nv_lshl_add_u32 v17, v17, 1, s33\nv_lshlrev_b32 v62, 7, v17\nv_add_u32 v63, {36*128}, v62')
    if a.o('kqe', 2) == 1: a('v_min_u32 v17, 22, v1\nv_subrev_u32 v17, 20, v17\nv_lshlrev_b32 v17, 8, v17\nv_readfirstlane_b32 s33, v62\nv_add_u32 v17, s33, v17\nv_cmp_gt_u32 vcc, 20, v1\nv_cndmask_b32 v23, v17, v23, vcc')
    for kb in range(5): a(f'v_cmp_eq_u32 vcc, {kb}, v6\nv_mov_b32 v{53+2*kb}, 0x3f803f80\nv_cndmask_b32 v{52+2*kb}, 0, v{53+2*kb}, vcc\nv_mov_b32 v{53+2*kb}, v{52+2*kb}')
    a(f's_lshl_b32 s{Q_S}, s47, 13\ns_lshl_b32 s33, s{WAVE}, 11\ns_add_u32 s{Q_S}, s{Q_S}, s33\ns_add_u32 s{Q_S}, s{Q_S}, {WS_S}')
    a(f's_mul_i32 s33, s49, 72\ns_add_u32 s33, s33, s50\ns_lshl_b32 s{Q_VWO}, s33, 13\ns_add_u32 s{Q_VWO}, s{Q_VWO}, {WS_VWO}\ns_mul_i32 s{Q_KQ}, s33, 2560\ns_add_u32 s{Q_KQ}, s{Q_KQ}, {WS_KQ}\ns_add_u32 s{Q_VO}, s{Q_KQ}, 0x5A000')
    a(f's_mul_i32 s{Q_SC}, s47, 36864\ns_add_u32 s{Q_SC}, s{Q_SC}, {WS_SC}\ns_mul_i32 s{Q_PUB}, s48, 6144\ns_add_u32 s{Q_PUB}, s{Q_PUB}, s{Q_SC}')
    a(f's_lshl_b32 s33, s{WAVE}, 11\nv_add_u32 v8, s33, v28\ns_lshl_b32 s33, s{WAVE}, 9\nv_add_u32 v9, s33, v11')
    a(f's_mul_i32 s33, s{WAVE}, 6144\nv_add_u32 v12, s33, v28')
    a(f'v_lshrrev_b32 v13, 2, v6\nv_lshlrev_b32 v13, 8, v13\nv_and_b32 v14, 3, v1\nv_lshl_add_u32 v13, v14, 2, v13\nv_add_u32 v13, {5*1024+128}, v13')
    a(f'v_lshrrev_b32 v14, 5, v1\nv_lshl_add_u32 v14, v14, 4, v13\nv_add_u32 v14, s33, v14')
    a(f's_lshl_b32 s52, s{WAVE}, 10\ns_add_u32 s33, s{WAVE}, 4\ns_min_u32 s53, s33, 5\ns_lshl_b32 s53, s53, 10\nv_add_u32 v18, s52, v28\nv_add_u32 v19, s53, v28\nv_add_u32 v15, 4096, v18')
    a(f's_cmp_lt_u32 s{WAVE}, 2\ns_cselect_b32 s33, 0, 0x7f000000\nv_add_u32 v10, s33, v19\nv_lshlrev_b32 v26, 8, v7\nv_cmp_eq_u32 vcc, 3, v7\nv_mov_b32 v27, 0xff800000\nv_cndmask_b32 v27, 0, v27, vcc')
    gpoll(a, lambda: gl(a), [GP(c, p) + 3 for c in range(3) for p in range(4)], T, pre=cnt)
    for c in range(3):
        for p in range(4): a.emit(unpack4(GP(c, p), T + p))
        b = GP(c, 0)
        for i in range(0, 4, 2): a(f'v_pk_add_f32 {vr(b+i,2)}, {vr(b+i,2)}, {vr(b+4+i,2)}\nv_pk_add_f32 {vr(b+8+i,2)}, {vr(b+8+i,2)}, {vr(b+12+i,2)}')
        for i in range(0, 4, 2): a(f'v_pk_add_f32 {vr(b+i,2)}, {vr(b+i,2)}, {vr(b+8+i,2)}')
    for i in range(6): a(f'v_lshlrev_b32 v{XF+2*i}, 16, v{XR+i}\nv_and_b32 v{XF+2*i+1}, s{MASKHI}, v{XR+i}')
    for c in range(3):
        b = GP(c, 0); g = GL[4*c:4*c+4]
        a(f'v_cvt_pk_bf16_f32 v{b}, v{b}, v{b+1}\nv_cvt_pk_bf16_f32 v{b+2}, v{b+2}, v{b+3}\nv_and_b32 v{g[1]}, s{MASKHI}, v{b}\nv_lshlrev_b32 v{g[0]}, 16, v{b}\nv_and_b32 v{g[3]}, s{MASKHI}, v{b+2}\nv_lshlrev_b32 v{g[2]}, 16, v{b+2}')
def stage4(a):
    T = T4
    flag2(a, 71, 16)
    a(f's_cmp_ge_u32 s{JJ}, 24\ns_cbranch_scc1 L_fin')
    a.stamp(12)
    a.poll_flags(23, 17)
    a.stamp(13)
    for u in range(2): a(f'buffer_load_dwordx4 {vr(160+4*u,4)}, v28, {WSR}, s{Q_S} offen offset:{1024*u} sc1')
    stok = a.vmtok()
    VW = lambda c, u: vr(64 + (c * 8 + u) * 4, 4)
    vt = {}
    for c in range(3):
        for u in range(8): fload(a, VW(c,u), u, 28, Q_VWO)
        a(f's_add_u32 s{Q_VWO}, s{Q_VWO}, 8192'); vt[c] = a.vmtok()
    def kvl(so, base):
        for c in range(3):
            r = base + 10 * c
            a(f'buffer_load_dwordx4 {ar(r,4)}, v28, {WSR}, s{so} offen sc1\nbuffer_load_dwordx4 {ar(r+4,4)}, v28, {WSR}, s{so} offen offset:1024 sc1\nbuffer_load_dwordx2 {ar(r+8,2)}, v11, {WSR}, s{so} offen offset:2048 sc1\ns_add_u32 s{so}, s{so}, 2560')
    if a.o('kqe', 2) == 1: kvl(Q_KQ, 32)
    if a.o('kqe', 2) == 2: a(f'buffer_load_dword v16, v62, {WSR}, 0 offen sc1')
    a.wvm(stok)
    E = 168
    for i in range(8): a(f'v_lshlrev_b32 v{E+2*i}, 16, v{160+i}\nv_and_b32 v{E+2*i+1}, s{MASKHI}, v{160+i}')
    tree(a, 'v_max3_f32', 'v_max_f32', 24, range(E, E + 16))
    xg(a, 'v_max_f32', 24, 25)
    a(f'v_mul_f32 v24, {LOG2E}, v24\ns_mov_b32 s78, {LOG2E}')
    for i in range(16): a(f'v_fma_f32 v{E+i}, v{E+i}, s78, -v24')
    for i in range(16): a(f'v_exp_f32 v{E+i}, v{E+i}')
    for i in range(8): a(f'v_cvt_pk_bf16_f32 v{160+i}, v{E+2*i}, v{E+2*i+1}')
    a(f'ds_write_b128 v8, v[160:163] offset:{L_P}\nds_write_b128 v8, v[164:167] offset:{L_P+1024}')
    for st in (8, 4, 2):
        for i in range(st): a(f'v_add_f32 v{E+i}, v{E+i}, v{E+st+i}')
    a(f'v_add_f32 v25, v{E}, v{E+1}')
    xg(a, 'v_add_f32', 25, 17)
    a(f'ds_write_b64 v9, v[24:25] offset:{L_ML}\ns_waitcnt lgkmcnt(0)\ns_barrier')
    for w in range(4): a(f'ds_read_b64 {vr(T+2*w,2)}, v11 offset:{L_ML+512*w}')
    for u in range(8): a(f'ds_read_b128 {ar(4*u,4)}, v28 offset:{L_P+1024*u}')
    a('s_waitcnt lgkmcnt(8)')
    a(f'v_max3_f32 v24, v{T}, v{T+2}, v{T+4}\nv_max_f32 v24, v24, v{T+6}')
    for w in range(4): a(f'v_sub_f32 v{T+2*w}, v{T+2*w}, v24')
    for w in range(4): a(f'v_exp_f32 v{T+2*w}, v{T+2*w}')
    a(f'v_mul_f32 v25, v{T}, v{T+1}')
    for w in range(1, 4): a(f'v_fma_f32 v25, v{T+2*w}, v{T+2*w+1}, v25')
    a('v_rcp_f32 v25, v25')
    for w in range(4): a(f'v_mul_f32 v{T+2*w}, v{T+2*w}, v25')
    a('s_waitcnt lgkmcnt(0)')
    AP = lambda c, w: 168 + (c * 4 + w) * 4 if c < 3 else None
    if a.o('kqe', 2) == 2:
        a(f's_waitcnt vmcnt(0)\nv_cmp_ne_u32 vcc, s{NONCE}, v16\ns_mov_b32 s47, 1\ns_nop 0\ns_cbranch_vccnz L_kqn\ns_mov_b32 s47, 0')
        n0 = a.vm; kvl(Q_KQ, 32); a.vm = n0
        a('L_kqn:')
    for c in range(3):
        if a.o('kqe', 2) != 2: a.wvm(vt[c])
        for h in range(2):
            for w in range(4): a(mf32(vr(AP(c,w),4), VW(c,2*w+h), ar(4*(2*w+h),4), vr(AP(c,w),4) if h else 0))
    assert AP(2, 3) + 4 <= XF
    if a.o('kqe', 2) == 0: a.poll_flags(62, 17); kvl(Q_KQ, 32)
    if a.o('kqe', 2) == 2:
        a('s_cmp_eq_u32 s47, 0\ns_cbranch_scc1 L_kqd'); a.poll_flags(62, 17); kvl(Q_KQ, 32); a('L_kqd:')
    for c in range(3):
        b = AP(c, 0)
        for i in range(4): a(f'v_mul_f32 v{b+i}, v{b+i}, v{T}')
        for w in range(1, 4):
            for i in range(4): a(f'v_fma_f32 v{b+i}, v{AP(c,w)+i}, v{T+2*w}, v{b+i}')
        for i in range(4): a(f'v_fma_f32 v{b+i}, v{b+i}, v{GL[4*c+i]}, v{XF+4*c+i}')
        for i in range(2): a(f'v_cvt_pk_bf16_f32 v{X1+2*c+i}, v{b+2*i}, v{b+2*i+1}')
    a('s_waitcnt vmcnt(0)')
    SC = lambda kb: vr(64 + 4 * kb, 4)
    for c in range(3):
        for kb in range(5): a(mf16(SC(5), ar(32+10*c+2*kb,2), vr(52+2*kb,2), SC(5) if c + kb else 0) + '\n' + mf16(SC(kb), ar(32+10*c+2*kb,2), vr(X1+2*c,2), SC(kb) if c else 0))
    a('s_mov_b32 s78, 0x3f803f80\nv_mov_b32 v24, 0\nv_mov_b32 v25, 0')
    for i in range(6): a(f'v_dot2_f32_bf16 v24, v{X1+i}, s78, v24\nv_dot2_f32_bf16 v25, v{X1+i}, v{X1+i}, v25')
    a('v_permlane32_swap_b32 v24, v25\nv_add_f32 v24, v24, v25\nv_mov_b32 v25, v24\nv_permlane16_swap_b32 v24, v25\nv_add_f32 v24, v24, v25')
    for u in range(6): a(f'ds_write_b128 v12, {SC(u)} offset:{L_R+1024*u}')
    a(f'ds_write_b32 v14, v24 offset:{L_R}\ns_waitcnt lgkmcnt(0)\ns_barrier')
    for q in range(2):
        for w in range(4): a(f'ds_read_b128 {vr(96+16*q+4*w,4)}, v{18+q} offset:{L_R+6144*w}')
    for q in range(2):
        a(f's_waitcnt lgkmcnt({4-4*q})')
        b = 96 + 16 * q
        for i in range(4): a(f'v_add_f32 v{b+i}, v{b+i}, v{b+4+i}\nv_add_f32 v{b+8+i}, v{b+8+i}, v{b+12+i}')
        for i in range(4): a(f'v_add_f32 v{b+i}, v{b+i}, v{b+8+i}')
        pack4(a, b)
        a(f'buffer_store_dwordx4 {vr(b,4)}, v{(18,10)[q]}, {WSR}, s{Q_PUB} offen sc1')
    a.stamp(14)
    PP = lambda q, p: 128 + (q * 6 + p) * 4
    def pl():
        a(f'buffer_load_dword v17, v63, {WSR}, 0 offen sc1')
        for p in range(6):
            a(f's_add_u32 s32, s{Q_SC}, {p*6144}')
            for q in range(2): a(f'buffer_load_dwordx4 {vr(PP(q,p),4)}, v{18+q}, {WSR}, s32 offen sc1')
    for i in range(6): a(f'v_lshlrev_b32 v{XF+2*i}, 16, v{X1+i}\nv_and_b32 v{XF+2*i+1}, s{MASKHI}, v{X1+i}')
    gpoll(a, pl, [PP(q, p) + 3 for q in range(2) for p in range(6)], T)
    a.stamp(15)
    a(f'v_cmp_ne_u32 vcc, s{NONCE}, v17\ns_nop 1\ns_cbranch_vccnz L_vol')
    kvl(Q_VO, 64)
    a('L_vol:')
    for q in range(2):
        for p in range(6): a.emit(unpack4(PP(q, p), T + (p & 3)))
        b = PP(q, 0)
        for i in range(4): a(f'v_add_f32 v{b+i}, v{b+i}, v{b+4+i}\nv_add_f32 v{b+8+i}, v{b+8+i}, v{b+12+i}\nv_add_f32 v{b+16+i}, v{b+16+i}, v{b+20+i}')
        for i in range(4): a(f'v_add_f32 v{b+i}, v{b+i}, v{b+8+i}')
        for i in range(4): a(f'v_add_f32 v{b+i}, v{b+i}, v{b+16+i}')
        a(f'ds_write_b128 v{(18,15)[q]}, {vr(b,4)} offset:{L_SUM}')
    a('s_cbranch_vccz L_vod')
    a.poll_flags(63, 17)
    kvl(Q_VO, 64)
    a('L_vod:')
    a('s_waitcnt lgkmcnt(0)\ns_barrier')
    a(f'ds_read_b32 v24, v13 offset:{L_SUM}\nds_read_b32 v25, v13 offset:{L_SUM+16}')
    Z, CS = 64, 96
    for kb in range(5): a(f'ds_read_b128 {vr(CS+4*kb,4)}, v26 offset:{L_SUM+5120+16*kb}\nds_read_b128 {vr(Z+4*kb,4)}, v28 offset:{L_SUM+1024*kb}')
    a('s_waitcnt lgkmcnt(10)')
    inv = '0x3a638e39'
    a(f'v_mul_f32 v24, {inv}, v24\nv_mul_f32 v25, {inv}, v25\nv_fma_f32 v25, -v24, v24, v25\nv_max_f32 v25, 0, v25\nv_add_f32 v25, 0x3727c5ac, v25\nv_rsq_f32 v25, v25\nv_mul_f32 v25, 0x3d2e1a93, v25')
    for kb in range(5):
        a(f's_waitcnt lgkmcnt({8-2*kb})')
        for i in range(4): a(f'v_fma_f32 v{Z+4*kb+i}, -v24, v{CS+4*kb+i}, v{Z+4*kb+i}')
    for i in range(20): a(f'v_mul_f32 v{Z+i}, v{Z+i}, v25' if i < 17 else f'v_fma_f32 v{Z+i}, v{Z+i}, v25, v27')
    tree(a, 'v_max3_f32', 'v_max_f32', 24, range(Z, Z + 20))
    xg(a, 'v_max_f32', 24, 25)
    for i in range(20): a(f'v_sub_f32 v{Z+i}, v{Z+i}, v24')
    for i in range(20): a(f'v_exp_f32 v{Z+i}, v{Z+i}')
    for i in range(10): a(f'v_add_f32 v{CS+i}, v{Z+i}, v{Z+10+i}')
    for i in range(5): a(f'v_add_f32 v{CS+i}, v{CS+i}, v{CS+5+i}')
    a(f'v_add_f32 v{CS}, v{CS}, v{CS+1}\nv_add_f32 v{CS+2}, v{CS+2}, v{CS+3}\nv_add_f32 v24, v{CS}, v{CS+4}\nv_add_f32 v24, v24, v{CS+2}')
    xg(a, 'v_add_f32', 24, 25)
    a('v_rcp_f32 v24, v24')
    for i in range(20): a(f'v_mul_f32 v{Z+i}, v{Z+i}, v24')
    for i in range(10): a(f'v_cvt_pk_bf16_f32 v{CS+i}, v{Z+2*i}, v{Z+2*i+1}')
    O = 128
    a('s_waitcnt vmcnt(0)')
    for c in range(3): a(mf32(vr(O+4*c,4), ar(64+10*c,4), vr(CS,4), 0))
    for c in range(3): a(mf32(vr(O+4*c,4), ar(68+10*c,4), vr(CS+4,4), vr(O+4*c,4)))
    for c in range(3): a(mf16(vr(O+4*c,4), ar(72+10*c,2), vr(CS+8,2), vr(O+4*c,4)))
    for c in range(3):
        b = O + 4 * c
        a(f'v_cvt_pk_bf16_f32 v{b}, v{b}, v{b+1}\nv_cvt_pk_bf16_f32 v{b+2}, v{b+2}, v{b+3}\nv_and_b32 v{b+1}, s{MASKHI}, v{b}\nv_lshlrev_b32 v{b}, 16, v{b}\nv_and_b32 v{b+3}, s{MASKHI}, v{b+2}\nv_lshlrev_b32 v{b+2}, 16, v{b+2}')
        for i in range(4): a(f'v_add_f32 v{b+i}, v{b+i}, v{XF+4*c+i}')
        a(f'v_cvt_pk_bf16_f32 v{b}, v{b}, v{b+1}\nv_cvt_pk_bf16_f32 v{b+1}, v{b+2}, v{b+3}')
        a(f'buffer_store_dwordx2 {vr(b,2)}, v4, s[{S_B}:{S_B+3}], s{Q_X} offen offset:{32*c}')
    a.stamp(7)
PH = {'prep4a': prep4a, 'pre3': pre3, 'wo': wo, 'main': main, 'side': side}
def build(prof=False, opt=None): return gen.build(prof, opt, PH)
if __name__ == '__main__':
    opt = eval(sys.argv[1]) if len(sys.argv) > 1 else {}
    open('standalone__pixart__diffusion.s', 'w').write(build(False, opt))
```
